```python
import torch

def _softmax(x, axis=-1):
    return torch.softmax(x, dim=axis)
def _gelu(x):
    return torch.nn.functional.gelu(x, approximate="tanh")
def _silu(x):
    return torch.nn.functional.silu(x)
def _sigmoid(x):
    return torch.sigmoid(x)
def _layernorm(x, axis=-1, eps=1e-5):
    m = x.mean(dim=axis, keepdim=True)
    v = x.var(dim=axis, keepdim=True, unbiased=False)
    return (x - m) / torch.sqrt(v + eps)
def _scatter_add(tgt, idx, src, axis=0):
    return tgt.clone().index_add_(axis, idx, src)
def _segment_sum(src, seg, n):
    out = torch.zeros((n,) + src.shape[1:], dtype=src.dtype)
    return out.index_add_(0, seg, src)
def _pad(x, pw):
    flat = tuple(v for pair in reversed(pw) for v in pair)
    return torch.nn.functional.pad(x, flat)

kernel_name = 'standalone__mha_block_cached__near_ridge'

def setup_inputs():

    _w = (lambda a: (lambda t: t.to(torch.bfloat16) if t.is_floating_point() else t)(torch.as_tensor(a)))
    B, Sq, D = 8, 128, 512
    H, Sk, Dh = 32, 2048, 128
    return {
        "x": _w((lambda *s: torch.randn(*s, dtype=torch.bfloat16) * 0.8)(B, Sq, D)),
        "k_cache": _w((lambda *s: torch.randn(*s, dtype=torch.bfloat16) * 0.8)(B, H, Sk, Dh)),
        "v_cache": _w((lambda *s: torch.randn(*s, dtype=torch.bfloat16) * 0.05)(B, H, Sk, Dh)),
        "wq": _w((lambda *s: torch.randn(*s, dtype=torch.bfloat16) * 0.8)(D, H * Dh) * (D ** -0.5)),
        "wo": _w((lambda *s: torch.randn(*s, dtype=torch.bfloat16) * 0.05)(H * Dh, D) * ((H * Dh) ** -0.5)),
    }

def reference(x, k_cache, v_cache, wq, wo):
    B, Sq, D = x.shape
    H, Dh = 32, 128
    q = (lambda x, *d: x.permute(*d))((x @ wq).reshape(B, Sq, H, Dh), 0, 2, 1, 3)
    scores = torch.einsum("bhqd,bhkd->bhqk", q, k_cache) * (Dh ** -0.5)
    p = _softmax(scores, axis=-1)
    o = torch.einsum("bhqk,bhkd->bhqd", p, v_cache)
    return (lambda x, *d: x.permute(*d))(o, 0, 2, 1, 3).reshape(B, Sq, H * Dh) @ wo
```

```python
import sys, math

NAME = "standalone__mha_block_cached__near_ridge_kernel"
C_SCALE = math.log2(math.e) / math.sqrt(128.0)
import struct
def f32bits(x): return struct.unpack("<I", struct.pack("<f", x))[0]

class Asm:
    def __init__(self):
        self.L = []
        self.lds_seq = 0
        self.uid = 0
    def e(self, s): self.L.append("    " + s)
    def c(self, s): self.L.append("    ; " + s)
    def label(self, s): self.L.append(s + ":")
    def newlabel(self, p="L"):
        self.uid += 1
        return f"{p}_{self.uid}"
    def lds(self, s):
        self.e(s); self.lds_seq += 1
        return self.lds_seq
    def wait_lds(self, tok):
        n = self.lds_seq - tok
        self.e(f"s_waitcnt lgkmcnt({min(n, 15)})")
    def nop(self, n):
        while n > 0:
            k = min(n, 16)
            self.e(f"s_nop {k-1}"); n -= k
    def text(self): return "\n".join(self.L) + "\n"

def vr(b, n): return f"v[{b}:{b+n-1}]"

SLOT = 32768
NSLOT = 5
LDS_BYTES = SLOT * NSLOT

S_K, S_V, S_WQ, S_X, S_O, S_WO, S_OUT, S_DBG = 20, 24, 28, 32, 36, 40, 44, 48
sW, sQG, sKH = 52, 53, 54
sB, sH = 55, 56
sC, sNC = 57, 58
sTOFF = 59
sWR = 60
sJ = 61
sDELTA = 62
sRD = 63
sT0, sT1, sT2, sT3 = 64, 65, 66, 67
sW2K = 68
sB2, sQB, sNB = 69, 70, 71
sNEG = 72

def srd(a, s, base_lo, base_hi, off_sgpr, nbytes):
    a.e(f"s_add_u32 s{s}, s{base_lo}, s{off_sgpr}")
    a.e(f"s_addc_u32 s{s+1}, s{base_hi}, 0")
    a.e(f"s_mov_b32 s{s+2}, {nbytes:#x}")
    a.e(f"s_mov_b32 s{s+3}, 0x20000")

def header(a, name):
    a.L.append(f".globl {name}"); a.L.append(".p2align 8"); a.L.append(f".type {name},@function"); a.label(name)

def descriptor(name, vgpr=256, sgpr=96):
    acc = (vgpr + 3) // 4 * 4
    return f""".p2align 6
.amdhsa_kernel {name}
  .amdhsa_next_free_vgpr {vgpr}
  .amdhsa_next_free_sgpr {sgpr}
  .amdhsa_accum_offset {acc}
  .amdhsa_group_segment_fixed_size 0
  .amdhsa_kernarg_size 64
  .amdhsa_user_sgpr_count 2
  .amdhsa_user_sgpr_kernarg_segment_ptr 1
  .amdhsa_system_sgpr_workgroup_id_x 1
.end_amdhsa_kernel
"""

vLANE = 1
vKOFF0, vKOFF1, vVOFF = 2, 3, 4
vM, vL = 5, 6
vKA = 8
vVA = 16
vTMP = 20
vQ = 32
vO = 64
vS = 128
vP = 144
vKF = 152
vVF = 184
vQACC = 64
vX = 96
vWF = 224
vWOFF = 20
vWA = 24
vXOFF = 26

def lane_decomp(a, lane, r, c, g, hi):
    a.e(f"v_bfe_u32 v{r}, v{lane}, 2, 2")
    a.e(f"v_and_b32 v{c}, 3, v{lane}")
    a.e(f"v_bfe_u32 v{g}, v{lane}, 4, 1")
    a.e(f"v_lshrrev_b32 v{hi}, 5, v{lane}")

def issue_tile(a, nt=" nt"):
    a.e(f"s_add_u32 s{sT0}, s{sWR}, s{sW2K}")
    a.e(f"s_mov_b32 m0, s{sT0}")
    a.e(f"s_add_u32 s{sT1}, s{sT0}, 16384")
    a.e(f"buffer_load_dwordx4 v{vKOFF0}, s[{S_K}:{S_K+3}], s{sTOFF} offen{nt} lds")
    a.e(f"buffer_load_dwordx4 v{vKOFF1}, s[{S_K}:{S_K+3}], s{sTOFF} offen offset:1024{nt} lds")
    a.e(f"s_mov_b32 m0, s{sT1}")
    a.e(f"s_add_u32 s{sWR}, s{sWR}, {SLOT}")
    a.e(f"buffer_load_dwordx4 v{vVOFF}, s[{S_V}:{S_V+3}], s{sTOFF} offen{nt} lds")
    a.e(f"buffer_load_dwordx4 v{vVOFF}, s[{S_V}:{S_V+3}], s{sTOFF} offen offset:1024{nt} lds")
    a.e(f"s_add_u32 s{sTOFF}, s{sTOFF}, 16384")
    a.e(f"s_cmp_ge_u32 s{sWR}, {LDS_BYTES}")
    a.e(f"s_cselect_b32 s{sWR}, 0, s{sWR}")

def gen_attn(a, name, cfg):
    header(a, name)
    a.e("s_cmp_ge_u32 s2, 256"); a.e(f"s_cbranch_scc1 L_end_{name}")
    a.e("s_load_dwordx16 s[4:19], s[0:1], 0")
    a.e("v_lshrrev_b32 v2, 6, v0")
    a.e(f"v_and_b32 v{vLANE}, 63, v0")
    a.e(f"v_readfirstlane_b32 s{sW}, v2")
    a.e(f"s_and_b32 s{sT0}, s2, 7"); a.e(f"s_lshr_b32 s{sT1}, s2, 3")
    a.e(f"s_and_b32 s{sT2}, s{sT1}, 3"); a.e(f"s_lshl_b32 s{sH}, s{sT0}, 2"); a.e(f"s_add_u32 s{sH}, s{sH}, s{sT2}")
    a.e(f"s_lshr_b32 s{sB}, s{sT1}, 2")
    a.e(f"s_and_b32 s{sQG}, s{sW}, 3"); a.e(f"s_lshr_b32 s{sKH}, s{sW}, 2")
    a.e(f"s_lshl_b32 s{sW2K}, s{sW}, 11")
    a.e(f"s_mov_b32 s{sC}, {f32bits(C_SCALE):#x}"); a.e(f"s_mov_b32 s{sNC}, {f32bits(-C_SCALE):#x}")
    a.e("s_waitcnt lgkmcnt(0)")
    a.e(f"s_lshl_b32 s{sT0}, s{sB}, 5"); a.e(f"s_add_u32 s{sT0}, s{sT0}, s{sH}"); a.e(f"s_lshl_b32 s{sT1}, s{sT0}, 19")
    srd(a, S_K, 6, 7, sT1, 0x80000)
    srd(a, S_V, 8, 9, sT1, 0x80000)
    a.e(f"s_lshl_b32 s{sT1}, s{sH}, 8")
    srd(a, S_WQ, 10, 11, sT1, 0x400000 - 31 * 256)
    a.e(f"s_lshl_b32 s{sT1}, s{sB}, 17")
    srd(a, S_X, 4, 5, sT1, 0x20000)
    a.e(f"s_lshl_b32 s{sT1}, s{sB}, 7"); a.e(f"s_add_u32 s{sT1}, s{sT1}, s{sH}"); a.e(f"s_lshl_b32 s{sT1}, s{sT1}, 13")
    srd(a, S_O, 18, 19, sT1, 3 * 32 * 8192 + 8192)

    t = [vTMP + 7 + i for i in range(5)]
    l4, cpos = t[0], t[1]
    a.e(f"v_lshrrev_b32 v{l4}, 4, v{vLANE}")
    a.e(f"v_and_b32 v{cpos}, 15, v{vLANE}")
    a.e(f"v_lshlrev_b32 v{t[2]}, 2, v{l4}")
    a.e(f"v_xor_b32 v{t[2]}, v{t[2]}, v{cpos}")
    a.e(f"v_lshlrev_b32 v{t[2]}, 4, v{t[2]}")
    a.e(f"v_lshl_add_u32 v{vWOFF}, v{l4}, 13, v{t[2]}")
    for i in range(1, 4):
        a.e(f"v_add_u32 v{vWOFF+i}, {i*(32768-1024)}, v{vWOFF}")
    a.e(f"v_and_b32 v{t[3]}, 31, v{vLANE}")
    a.e(f"s_lshl_b32 s{sT0}, s{sQG}, 5")
    a.e(f"v_add_u32 v{t[3]}, s{sT0}, v{t[3]}")
    a.e(f"v_lshrrev_b32 v{t[4]}, 5, v{vLANE}")
    a.e(f"v_lshlrev_b32 v{t[4]}, 4, v{t[4]}")
    a.e(f"v_lshl_add_u32 v{vXOFF}, v{t[3]}, 10, v{t[4]}")
    a.e(f"v_lshl_add_u32 v{vVOFF}, v{l4}, 8, v{t[2]}")
    a.e(f"v_add_u32 v{vVOFF}, s{sW2K}, v{vVOFF}")
    a.e(f"s_lshl_b32 s{sT0}, s{sW}, 3"); a.e(f"s_and_b32 s{sT0}, s{sT0}, 8")
    a.e(f"v_add_u32 v{t[3]}, s{sT0}, v{l4}")
    a.e(f"v_xor_b32 v{t[3]}, v{t[3]}, v{cpos}")
    a.e(f"v_lshlrev_b32 v{t[3]}, 4, v{t[3]}")
    a.e(f"v_lshl_add_u32 v{vKOFF0}, v{l4}, 8, v{t[3]}")
    a.e(f"v_add_u32 v{vKOFF0}, s{sW2K}, v{vKOFF0}")
    a.e(f"v_xor_b32 v{vKOFF1}, 64, v{vKOFF0}")

    def issue_W(chunk, slot):
        for grp in range(2):
            a.e(f"s_lshl_b32 s{sT0}, s{sQG}, 13")
            a.e(f"s_add_u32 s{sT0}, s{sT0}, {slot*SLOT + grp*4096}")
            a.e(f"s_mov_b32 m0, s{sT0}")
            a.e(f"s_lshl_b32 s{sT1}, s{sQG}, 18")
            a.e(f"s_add_u32 s{sT1}, s{sT1}, {chunk*(1<<20) + grp*4*32768}")
            for i in range(4):
                a.e(f"buffer_load_dwordx4 v{vWOFF+i}, s[{S_WQ}:{S_WQ+3}], s{sT1} offen offset:{i*1024} lds")
    def issue_x():
        for s in range(32):
            a.e(f"buffer_load_dwordx4 {vr(vX+4*s,4)}, v{vXOFF}, s[{S_X}:{S_X+3}], 0 offen offset:{s*32}")

    a.e(f"s_cmp_ge_u32 s{sKH}, 1"); a.e("s_cbranch_scc1 L_proB")
    issue_W(0, 0)
    issue_x()
    issue_W(1, 1)
    a.e("s_branch L_proJoin")
    a.label("L_proB")
    issue_x()
    tk = [vO + i for i in range(4)]; tv = vO + 4
    a.e(f"s_lshl_b32 s{sT2}, s{sQG}, 12")
    a.e(f"v_xor_b32 v{t[3]}, v{l4}, v{cpos}")
    a.e(f"v_lshlrev_b32 v{t[3]}, 4, v{t[3]}")
    a.e(f"v_lshl_add_u32 v{tk[0]}, v{l4}, 8, v{t[3]}")
    a.e(f"v_add_u32 v{tk[0]}, s{sT2}, v{tk[0]}")
    a.e(f"v_xor_b32 v{tk[1]}, 64, v{tk[0]}")
    a.e(f"v_xor_b32 v{tk[2]}, 128, v{tk[0]}")
    a.e(f"v_xor_b32 v{tk[3]}, 192, v{tk[0]}")
    a.e(f"v_lshl_add_u32 v{tv}, v{l4}, 8, v{t[2]}")
    a.e(f"v_add_u32 v{tv}, s{sT2}, v{tv}")
    for tl in range(3):
        a.e(f"s_add_u32 s{sT0}, s{sT2}, {(2+tl)*SLOT}")
        a.e(f"s_mov_b32 m0, s{sT0}")
        a.e(f"s_mov_b32 s{sT1}, {tl*16384}")
        for i in range(4):
            a.e(f"buffer_load_dwordx4 v{tk[i]}, s[{S_K}:{S_K+3}], s{sT1} offen offset:{i*1024} nt lds")
        a.e(f"s_add_u32 s{sT0}, s{sT0}, 16384")
        a.e(f"s_mov_b32 m0, s{sT0}")
        a.e("s_nop 0")
        for i in range(4):
            a.e(f"buffer_load_dwordx4 v{tv}, s[{S_V}:{S_V+3}], s{sT1} offen offset:{i*1024} nt lds")
    a.label("L_proJoin")
    a.e(f"s_mov_b32 s{sTOFF}, {3*16384}")
    a.e(f"s_mov_b32 s{sWR}, 0")
    a.e(f"s_mov_b32 s{sNEG}, {SLOT - LDS_BYTES}")

    r, c, g, hi = t[0], t[1], t[2], t[3]
    lane_decomp(a, vLANE, r, c, g, hi)
    lo = t[4]
    a.e(f"v_lshlrev_b32 v{lo}, 3, v{c}")
    a.e(f"v_lshl_add_u32 v{lo}, v{g}, 5, v{lo}")
    for tt in range(2):
        a.e(f"s_lshl_b32 s{sT0}, s{sKH}, 1"); a.e(f"s_add_u32 s{sT0}, s{sT0}, {tt}")
        a.e(f"v_xor_b32 v{vWA+tt}, s{sT0}, v{r}")
        a.e(f"v_lshl_add_u32 v{vWA+tt}, v{vWA+tt}, 6, v{lo}")
        a.e(f"v_lshl_add_u32 v{vWA+tt}, v{r}, 8, v{vWA+tt}")
        a.e(f"v_lshl_add_u32 v{vWA+tt}, v{hi}, 11, v{vWA+tt}")
    for aa in range(4):
        a.e(f"s_lshl_b32 s{sT0}, s{sKH}, 1"); a.e(f"s_xor_b32 s{sT0}, s{sT0}, {aa}")
        a.e(f"v_xor_b32 v{vVA+aa}, s{sT0}, v{r}")
        a.e(f"v_lshl_add_u32 v{vVA+aa}, v{vVA+aa}, 6, v{lo}")
        a.e(f"v_lshl_add_u32 v{vVA+aa}, v{r}, 8, v{vVA+aa}")
        a.e(f"v_lshl_add_u32 v{vVA+aa}, v{hi}, 10, v{vVA+aa}")
        a.e(f"s_lshl_b32 s{sT0}, s{sKH}, 13"); a.e(f"s_add_u32 s{sT0}, s{sT0}, {2*SLOT+16384}")
        a.e(f"v_add_u32 v{vVA+aa}, s{sT0}, v{vVA+aa}")
    a.e(f"v_and_b32 v{r}, 15, v{vLANE}")
    a.e(f"v_xor_b32 v{r}, v{r}, v{hi}")
    a.e(f"v_lshlrev_b32 v{r}, 4, v{r}")
    a.e(f"v_and_b32 v{c}, 31, v{vLANE}")
    a.e(f"v_lshl_add_u32 v{r}, v{c}, 8, v{r}")
    a.e(f"s_lshl_b32 s{sT0}, s{sKH}, 13"); a.e(f"s_add_u32 s{sT0}, s{sT0}, {2*SLOT}")
    a.e(f"s_lshl_b32 s{sT1}, s{sKH}, 7")
    a.e(f"v_xor_b32 v{r}, s{sT1}, v{r}")
    a.e(f"v_add_u32 v{r}, s{sT0}, v{r}")
    for s in range(8):
        a.e(f"v_xor_b32 v{vKA+s}, {s<<5}, v{r}")

    def role_wait(nA, nB):
        lb = a.newlabel("L_rw"); lj = a.newlabel("L_rj")
        a.e(f"s_cmp_ge_u32 s{sKH}, 1"); a.e(f"s_cbranch_scc1 {lb}")
        a.e(f"s_waitcnt vmcnt({nA})"); a.e(f"s_branch {lj}")
        a.label(lb); a.e(f"s_waitcnt vmcnt({nB})"); a.label(lj)
    def only_A(fn):
        lb = a.newlabel("L_oa")
        a.e(f"s_cmp_ge_u32 s{sKH}, 1"); a.e(f"s_cbranch_scc1 {lb}")
        fn()
        a.label(lb)
    def qproj_chunk(ch, slot):
        toks = {}
        def rd(s):
            for tt in range(2):
                b = vWF + ((s % 4) * 2 + tt) * 4
                off = slot * SLOT + s * 4096
                a.lds(f"ds_read_b64_tr_b16 {vr(b,2)}, v{vWA+tt} offset:{off}")
                toks[(s, tt)] = a.lds(f"ds_read_b64_tr_b16 {vr(b+2,2)}, v{vWA+tt} offset:{off+1024}")
        for s in range(2): rd(s)
        for s in range(8):
            if s + 2 < 8: rd(s + 2)
            ks = ch * 8 + s
            for tt in range(2):
                a.wait_lds(toks[(s, tt)])
                b = vWF + ((s % 4) * 2 + tt) * 4
                cin = "0" if ks == 0 else vr(vQACC + 16 * tt, 16)
                a.e(f"v_mfma_f32_32x32x16_bf16 {vr(vQACC+16*tt,16)}, {vr(b,4)}, {vr(vX+4*ks,4)}, {cin}")
    role_wait(32, 48); a.e("s_barrier")
    qproj_chunk(0, 0)
    role_wait(0, 40); a.e("s_barrier")
    only_A(lambda: issue_W(2, 0))
    qproj_chunk(1, 1)
    role_wait(0, 32); a.e("s_barrier")
    only_A(lambda: issue_W(3, 1))
    qproj_chunk(2, 0)
    role_wait(0, 24); a.e("s_barrier")
    issue_tile(a)
    qproj_chunk(3, 1)
    a.nop(12)
    for tt in range(2):
        for j in range(2):
            q = vQ + (tt * 2 + j) * 4
            src = vQACC + 16 * tt + 8 * j
            for i in range(4):
                a.e(f"v_cvt_pk_bf16_f32 v{q+i}, v{src+2*i}, v{src+2*i+1}")
    a.nop(2)
    for f in range(4):
        q = vQ + f * 4
        a.e(f"v_permlane32_swap_b32 v{q}, v{q+2}")
        a.e(f"v_permlane32_swap_b32 v{q+1}, v{q+3}")
    a.e("s_barrier")
    xa = vTMP
    a.e(f"s_lshl_b32 s{sT0}, s{sW}, 12"); a.e(f"s_add_u32 s{sT0}, s{sT0}, {SLOT}")
    a.e(f"v_lshlrev_b32 v{xa}, 4, v{vLANE}")
    a.e(f"v_add_u32 v{xa}, s{sT0}, v{xa}")
    a.e(f"v_xor_b32 v{xa+1}, 16384, v{xa}")
    for f in range(4):
        a.e(f"ds_write_b128 v{xa}, {vr(vQ+4*f,4)} offset:{f*1024}")
    a.e(f"v_mov_b32 v{vM}, 0xff800000")
    a.e(f"v_mov_b32 v{vL}, 0")
    for i in range(64): a.e(f"v_mov_b32 v{vO+i}, 0")
    a.e("s_waitcnt lgkmcnt(0)"); a.e("s_barrier")
    for f in range(4):
        a.e(f"ds_read_b128 {vr(vQ+16+4*f,4)}, v{xa+1} offset:{f*1024}")
    a.e("s_waitcnt lgkmcnt(0)")
    a.e(f"s_mov_b32 s{sJ}, 0")
    a.e(f"s_mov_b32 s{sRD}, {2*SLOT}")

    a.L.append(".p2align 6")
    a.label("L_loop")
    a.lds_seq = 0
    a.e(f"s_cmp_ge_u32 s{sJ}, 29"); a.e("s_cbranch_scc1 L_wtail")
    a.e("s_waitcnt vmcnt(12)")
    a.label("L_wdone")
    a.e("s_barrier")
    ktok = []
    for s in range(8):
        ktok.append(a.lds(f"ds_read_b128 {vr(vKF+4*s,4)}, v{vKA+s}"))
    a.e(f"s_cmp_ge_u32 s{sJ}, 28"); a.e("s_cbranch_scc1 L_noissue")
    issue_tile(a)
    a.label("L_noissue")
    a.e(f"s_add_u32 s{sRD}, s{sRD}, {SLOT}")
    a.e(f"s_cmp_ge_u32 s{sRD}, {LDS_BYTES}")
    a.e(f"s_cselect_b32 s{sDELTA}, s{sNEG}, {SLOT}")
    a.e(f"s_cselect_b32 s{sRD}, 0, s{sRD}")
    vtok = {}
    vorder = [(j, aa) for j in range(2) for aa in range(4)]
    def vread(idx):
        j, aa = vorder[idx]
        b = vVF + idx * 4
        a.lds(f"ds_read_b64_tr_b16 {vr(b,2)}, v{vVA+aa} offset:{j*4096}")
        vtok[(j, aa)] = a.lds(f"ds_read_b64_tr_b16 {vr(b+2,2)}, v{vVA+aa} offset:{j*4096+2048}")
    for s in range(8):
        a.wait_lds(ktok[s])
        cin = "0" if s == 0 else vr(vS, 16)
        a.e(f"v_mfma_f32_32x32x16_bf16 {vr(vS,16)}, {vr(vKF+4*s,4)}, {vr(vQ+4*s,4)}, {cin}")
        if s == 7: a.e("s_waitcnt lgkmcnt(13)")
        vread(s)
    for s in range(8): a.e(f"v_add_u32 v{vKA+s}, s{sDELTA}, v{vKA+s}")
    for aa in range(4): a.e(f"v_add_u32 v{vVA+aa}, s{sDELTA}, v{vVA+aa}")
    mx, t2, al, nm = vTMP, vTMP + 1, vTMP + 2, vTMP + 3
    a.e(f"v_max3_f32 v{mx}, v{vS}, v{vS+1}, v{vM}")
    for i in range(1, 8):
        a.e(f"v_max3_f32 v{mx}, v{vS+2*i}, v{vS+2*i+1}, v{mx}")
    a.e(f"v_mov_b32 v{t2}, v{mx}")
    a.nop(2)
    a.e(f"v_permlane32_swap_b32 v{mx}, v{t2}")
    a.e(f"v_max_f32 v{mx}, v{mx}, v{t2}")
    a.e(f"v_sub_f32 v{al}, v{vM}, v{mx}")
    a.e(f"v_mul_f32 v{nm}, s{sNC}, v{mx}")
    a.e(f"v_mul_f32 v{al}, s{sC}, v{al}")
    a.e(f"v_mov_b32 v{vM}, v{mx}")
    a.e(f"v_exp_f32 v{al}, v{al}")
    for i in range(16):
        a.e(f"v_fma_f32 v{vS+i}, v{vS+i}, s{sC}, v{nm}")
    for i in range(16):
        a.e(f"v_exp_f32 v{vS+i}, v{vS+i}")
    a.e(f"v_mul_f32 v{vL}, v{vL}, v{al}")
    for i in range(64):
        a.e(f"v_mul_f32 v{vO+i}, v{vO+i}, v{al}")
    for i in range(8):
        a.e(f"v_cvt_pk_bf16_f32 v{vP+i}, v{vS+2*i}, v{vS+2*i+1}")
    a.e(f"v_add_f32 v{t2}, v{vS}, v{vS+1}")
    for i in range(2, 16, 2):
        a.e(f"v_add_f32 v{vL}, v{vL}, v{vS+i}")
        a.e(f"v_add_f32 v{t2}, v{t2}, v{vS+i+1}")
    a.e(f"v_add_f32 v{vL}, v{vL}, v{t2}")
    for idx in range(8):
        j, aa = vorder[idx]
        a.wait_lds(vtok[(j, aa)])
        a.e(f"v_mfma_f32_32x32x16_bf16 {vr(vO+16*aa,16)}, {vr(vVF+4*idx,4)}, {vr(vP+4*j,4)}, {vr(vO+16*aa,16)}")
    a.e(f"s_add_u32 s{sJ}, s{sJ}, 1")
    a.e(f"s_cmp_lt_u32 s{sJ}, 32"); a.e("s_cbranch_scc1 L_loop")
    a.e("s_branch L_loopdone")
    a.label("L_wtail")
    a.e(f"s_cmp_eq_u32 s{sJ}, 29"); a.e("s_cbranch_scc0 L_wt2")
    a.e("s_waitcnt vmcnt(8)"); a.e("s_branch L_wdone")
    a.label("L_wt2")
    a.e(f"s_cmp_eq_u32 s{sJ}, 30"); a.e("s_cbranch_scc0 L_wt3")
    a.e("s_waitcnt vmcnt(4)"); a.e("s_branch L_wdone")
    a.label("L_wt3")
    a.e("s_waitcnt vmcnt(0)"); a.e("s_branch L_wdone")
    a.label("L_loopdone")

    a.e("s_barrier")
    a.e(f"v_mov_b32 v{t2}, v{vL}")
    ea = vTMP + 4
    a.e(f"v_lshlrev_b32 v{ea}, 4, v{vLANE}")
    a.e(f"s_lshl_b32 s{sT0}, s{sW}, 13")
    a.e(f"v_permlane32_swap_b32 v{vL}, v{t2}")
    a.e(f"v_add_u32 v{ea}, s{sT0}, v{ea}")
    a.e(f"v_add_f32 v{vL}, v{vL}, v{t2}")
    a.e(f"v_xor_b32 v{ea+1}, 32768, v{ea}")
    a.e(f"v_lshlrev_b32 v{ea+2}, 3, v{vLANE}")
    a.e(f"s_lshl_b32 s{sT0}, s{sW}, 9"); a.e(f"s_add_u32 s{sT0}, s{sT0}, 65536")
    a.e(f"v_add_u32 v{ea+2}, s{sT0}, v{ea+2}")
    a.e(f"v_xor_b32 v{ea+3}, 2048, v{ea+2}")
    a.nop(4)
    a.e(f"v_mov_b32 v{mx}, v{vM}"); a.e(f"v_mov_b32 v{mx+1}, v{vL}")
    a.e(f"ds_write_b64 v{ea+2}, {vr(mx,2)}")
    for i in range(8):
        a.e(f"ds_write_b128 v{ea}, {vr(vO+32+4*i,4)} offset:{i*1024}")
    a.e("s_waitcnt lgkmcnt(0)"); a.e("s_barrier")
    mp = vTMP + 8
    a.e(f"ds_read_b64 {vr(mp,2)}, v{ea+3}")
    for i in range(8):
        a.e(f"ds_read_b128 {vr(vKF+4*i,4)}, v{ea+1} offset:{i*1024}")
    a.e("s_waitcnt lgkmcnt(8)")
    mt, ws_, wp = vTMP, vTMP + 1, vTMP + 2
    a.e(f"v_max_f32 v{mt}, v{vM}, v{mp}")
    a.e(f"v_sub_f32 v{ws_}, v{vM}, v{mt}")
    a.e(f"v_sub_f32 v{wp}, v{mp}, v{mt}")
    a.e(f"v_mul_f32 v{ws_}, s{sC}, v{ws_}")
    a.e(f"v_mul_f32 v{wp}, s{sC}, v{wp}")
    a.e(f"v_exp_f32 v{ws_}, v{ws_}")
    a.e(f"v_exp_f32 v{wp}, v{wp}")
    a.nop(1)
    a.e(f"v_mul_f32 v{mt}, v{vL}, v{ws_}")
    a.e(f"v_fma_f32 v{mt}, v{mp+1}, v{wp}, v{mt}")
    a.e(f"v_rcp_f32 v{mt}, v{mt}")
    a.nop(1)
    a.e(f"v_mul_f32 v{ws_}, v{ws_}, v{mt}")
    a.e(f"v_mul_f32 v{wp}, v{wp}, v{mt}")
    for i in range(32):
        a.e(f"v_mul_f32 v{vO+i}, v{vO+i}, v{ws_}")
    a.e("s_waitcnt lgkmcnt(0)")
    for i in range(32):
        a.e(f"v_fma_f32 v{vO+i}, v{vKF+i}, v{wp}, v{vO+i}")
    for i in range(16):
        a.e(f"v_cvt_pk_bf16_f32 v{vVF+i}, v{vO+2*i}, v{vO+2*i+1}")
    a.e(f"s_lshl_b32 s{sT0}, s{sQG}, 18"); a.e(f"s_lshl_b32 s{sT1}, s{sKH}, 12"); a.e(f"s_add_u32 s{sT0}, s{sT0}, s{sT1}")
    a.e(f"v_lshlrev_b32 v{ea}, 4, v{vLANE}")
    for f in range(4):
        a.e(f"buffer_store_dwordx4 {vr(vVF+4*f,4)}, v{ea}, s[{S_O}:{S_O+3}], s{sT0} offen offset:{f*1024}{cfg.get('ostore','')}")
    a.label(f"L_end_{name}")
    a.e("s_endpgm")

def gen_oproj(a, name, cfg):
    header(a, name)
    a.e("s_cmp_ge_u32 s2, 256"); a.e(f"s_cbranch_scc1 L_end_{name}")
    a.e("s_load_dwordx16 s[4:19], s[0:1], 0")
    a.e("v_lshrrev_b32 v2, 6, v0")
    a.e(f"v_and_b32 v{vLANE}, 63, v0")
    a.e(f"v_readfirstlane_b32 s{sW}, v2")
    a.e(f"s_and_b32 s{sB2}, s2, 7"); a.e(f"s_lshr_b32 s{sT1}, s2, 3")
    a.e(f"s_and_b32 s{sQB}, s{sT1}, 3"); a.e(f"s_lshr_b32 s{sNB}, s{sT1}, 2")
    a.e("s_waitcnt lgkmcnt(0)")
    a.e(f"s_lshl_b32 s{sT0}, s{sB2}, 2"); a.e(f"s_add_u32 s{sT0}, s{sT0}, s{sQB}"); a.e(f"s_lshl_b32 s{sT0}, s{sT0}, 18")
    a.e(f"s_lshl_b32 s{sT1}, s{sW}, 15"); a.e(f"s_add_u32 s{sT0}, s{sT0}, s{sT1}")
    srd(a, S_O, 18, 19, sT0, 32768)
    a.e(f"s_lshl_b32 s{sT0}, s{sW}, 19"); a.e(f"s_lshl_b32 s{sT1}, s{sNB}, 7"); a.e(f"s_add_u32 s{sT0}, s{sT0}, s{sT1}")
    srd(a, S_WO, 12, 13, sT0, 511 * 1024 + 128)
    a.e(f"s_lshl_b32 s{sT0}, s{sB2}, 17"); a.e(f"s_lshl_b32 s{sT1}, s{sQB}, 15"); a.e(f"s_add_u32 s{sT0}, s{sT0}, s{sT1}")
    a.e(f"s_lshl_b32 s{sT1}, s{sNB}, 7"); a.e(f"s_add_u32 s{sT0}, s{sT0}, s{sT1}")
    srd(a, S_OUT, 14, 15, sT0, 31 * 1024 + 128)
    vDO = 2
    vAA = 6
    vBO = 8
    t = [10, 11, 12, 13, 14]
    vACC = 16
    vAF = 48
    vB = 96
    REG = 20480
    a.e(f"v_and_b32 v{t[0]}, 7, v{vLANE}")
    a.e(f"v_bfe_u32 v{t[1]}, v{vLANE}, 4, 1")
    a.e(f"v_lshlrev_b32 v{t[1]}, 2, v{t[1]}")
    a.e(f"v_xor_b32 v{t[0]}, v{t[0]}, v{t[1]}")
    a.e(f"v_lshlrev_b32 v{t[0]}, 4, v{t[0]}")
    a.e(f"v_lshrrev_b32 v{t[1]}, 3, v{vLANE}")
    a.e(f"v_lshl_add_u32 v{vDO}, v{t[1]}, 10, v{t[0]}")
    for i in range(1, 4): a.e(f"v_add_u32 v{vDO+i}, {i*(8192-1024)}, v{vDO}")
    a.e(f"v_lshlrev_b32 v{vBO}, 4, v{vLANE}")
    a.e(f"s_mul_i32 s{sWR}, s{sW}, {REG}")
    NCH = 16; NS = 5
    def issue(cn):
        a.e(f"s_add_u32 s{sT0}, s{sWR}, {(cn % NS)*4096}")
        a.e(f"s_mov_b32 m0, s{sT0}")
        a.e(f"s_mov_b32 s{sT1}, {cn*32*1024}")
        for i in range(4):
            a.e(f"buffer_load_dwordx4 v{vDO+i}, s[{S_WO}:{S_WO+3}], s{sT1} offen offset:{i*1024} lds")
        for jj in range(2):
            ks = cn * 2 + jj
            a.e(f"s_mov_b32 s{sT2}, {ks*1024}")
            a.e(f"buffer_load_dwordx4 {vr(vB+4*ks,4)}, v{vBO}, s[{S_O}:{S_O+3}], s{sT2} offen{cfg.get('oload','')}")
    for cn in range(NS): issue(cn)
    r, c, g, hi, lo = t
    lane_decomp(a, vLANE, r, c, g, hi)
    a.e(f"v_lshlrev_b32 v{lo}, 3, v{c}")
    a.e(f"v_lshl_add_u32 v{lo}, v{g}, 5, v{lo}")
    a.e(f"v_lshrrev_b32 v{c}, 1, v{r}")
    for u in range(2):
        a.e(f"v_xor_b32 v{vAA+u}, {u}, v{c}")
        a.e(f"v_lshl_add_u32 v{vAA+u}, v{vAA+u}, 6, v{lo}")
        a.e(f"v_lshl_add_u32 v{vAA+u}, v{r}, 7, v{vAA+u}")
        a.e(f"v_lshl_add_u32 v{vAA+u}, v{hi}, 9, v{vAA+u}")
        a.e(f"v_add_u32 v{vAA+u}, s{sWR}, v{vAA+u}")
    for cn in range(NCH):
        rem = min(NCH - 1 - cn, NS - 1)
        a.e(f"s_waitcnt vmcnt({6*rem})")
        fb = vAF + (cn % 2) * 16
        for jj in range(2):
            for u in range(2):
                b = fb + (jj * 2 + u) * 4
                off = (cn % NS) * 4096 + jj * 2048
                a.e(f"ds_read_b64_tr_b16 {vr(b,2)}, v{vAA+u} offset:{off}")
                a.e(f"ds_read_b64_tr_b16 {vr(b+2,2)}, v{vAA+u} offset:{off+1024}")
        a.e("s_waitcnt lgkmcnt(0)")
        if cn + NS < NCH: issue(cn + NS)
        for jj in range(2):
            ks = cn * 2 + jj
            for u in range(2):
                b = fb + (jj * 2 + u) * 4
                cin = "0" if ks == 0 else vr(vACC + 16 * u, 16)
                a.e(f"v_mfma_f32_32x32x16_bf16 {vr(vACC+16*u,16)}, {vr(b,4)}, {vr(vB+4*ks,4)}, {cin}")
    a.e("s_barrier")
    q = t[0]; wa = t[1]
    a.e(f"v_and_b32 v{q}, 31, v{vLANE}")
    a.e(f"v_xor_b32 v{wa}, v{q}, v{hi}")
    a.e(f"v_lshlrev_b32 v{wa}, 4, v{wa}")
    a.e(f"v_lshl_add_u32 v{wa}, v{hi}, 9, v{wa}")
    a.e(f"s_lshl_b32 s{sT0}, s{sW}, 13")
    a.e(f"v_add_u32 v{wa}, s{sT0}, v{wa}")
    a.nop(6)
    for u in range(2):
        for gg in range(4):
            k = u * 8 + gg * 2
            a.e(f"v_xor_b32 v{t[2]}, {k*16}, v{wa}")
            a.e(f"ds_write_b128 v{t[2]}, {vr(vACC+16*u+4*gg,4)} offset:{k*512}")
    a.e("s_waitcnt lgkmcnt(0)"); a.e("s_barrier")
    a.e(f"v_lshrrev_b32 v{q}, 4, v{vLANE}")
    a.e(f"s_lshl_b32 s{sT0}, s{sW}, 2")
    a.e(f"v_add_u32 v{q}, s{sT0}, v{q}")
    a.e(f"v_and_b32 v{t[2]}, 15, v{vLANE}")
    a.e(f"v_xor_b32 v{wa}, v{q}, v{t[2]}")
    a.e(f"v_lshlrev_b32 v{wa}, 4, v{wa}")
    a.e(f"v_lshl_add_u32 v{wa}, v{t[2]}, 9, v{wa}")
    for s in range(8):
        a.e(f"ds_read_b128 {vr(vB+4*s,4)}, v{wa} offset:{s*8192}")
    a.e(f"v_lshlrev_b32 v{t[3]}, 3, v{t[2]}")
    a.e(f"v_lshl_add_u32 v{t[3]}, v{q}, 10, v{t[3]}")
    for s in range(1, 8):
        a.e(f"s_waitcnt lgkmcnt({7-s})")
        for i in range(4):
            a.e(f"v_add_f32 v{vB+i}, v{vB+i}, v{vB+4*s+i}")
    a.e(f"v_cvt_pk_bf16_f32 v{vACC}, v{vB}, v{vB+1}")
    a.e(f"v_cvt_pk_bf16_f32 v{vACC+1}, v{vB+2}, v{vB+3}")
    a.e(f"buffer_store_dwordx2 {vr(vACC,2)}, v{t[3]}, s[{S_OUT}:{S_OUT+3}], 0 offen")
    a.label(f"L_end_{name}")
    a.e("s_endpgm")

def gen(cfg):
    a = Asm()
    hdr = [
        f"; @launch kernel=attn_kernel grid=(256,1,1) block=(512,1,1) lds={LDS_BYTES}",
        f"; @launch kernel=oproj_kernel grid=(256,1,1) block=(512,1,1) lds={LDS_BYTES}",
        '.amdgcn_target "amdgcn-amd-amdhsa--gfx950"', ".text"]
    gen_attn(a, "attn_kernel", cfg)
    gen_oproj(a, "oproj_kernel", cfg)
    txt = "\n".join(hdr) + "\n" + a.text()
    txt += '.section .rodata,"a"\n' + descriptor("attn_kernel") + descriptor("oproj_kernel")
    return txt

if __name__ == "__main__":
    out = sys.argv[1] if len(sys.argv) > 1 else "k.s"
    open(out, "w").write(gen({}))
```

```python
import sys, math, struct

NAME = "standalone__mha_block_cached__near_ridge_kernel"
C_SCALE = math.log2(math.e) / math.sqrt(128.0)
def f32bits(x): return struct.unpack("<I", struct.pack("<f", x))[0]

class Asm:
    def __init__(self):
        self.L = []; self.lds_seq = 0; self.uid = 0
    def e(self, s): self.L.append("    " + s)
    def c(self, s): self.L.append("    ; " + s)
    def label(self, s): self.L.append(s + ":")
    def newlabel(self, p="L"):
        self.uid += 1; return f"{p}_{self.uid}"
    def lds(self, s):
        self.e(s); self.lds_seq += 1; return self.lds_seq
    def wait_lds(self, tok):
        self.e(f"s_waitcnt lgkmcnt({min(self.lds_seq - tok, 15)})")
    def nop(self, n):
        while n > 0:
            k = min(n, 16); self.e(f"s_nop {k-1}"); n -= k
    def text(self): return "\n".join(self.L) + "\n"

def vr(b, n): return f"v[{b}:{b+n-1}]"
def sr(b): return f"s[{b}:{b+3}]"

SLOT = 32768
LDS_BYTES = SLOT * 5

S_K, S_V, S_WQ, S_X, S_O, S_WO, S_OUT, S_DBG, S_OL = 20, 24, 28, 32, 36, 40, 44, 48, 80
sW, sQG, sKH, sB, sH, sC, sNC, sTOFF, sWR, sJ, sDELTA, sRD = range(52, 64)
sT0, sT1, sT2, sT3 = 64, 65, 66, 67
sW2K, sB2, sQB, sNB, sNEG, sROT = 68, 69, 70, 71, 72, 73
sWARM, sW4K, sF = 77, 78, 79
sHR = 84

vLANE = 1
vKOFF0, vKOFF1, vVOFF = 2, 3, 4
vM, vL, vST = 5, 6, 7
vKA = 8
vVA = 16
vNM, vMT = 20, 21
vTMP = 22
vQ = 32
vO = 64
vS = [128, 144]
vP = 160
vKF = 168
vVF = 200
vDUM = 232
vDO = 236
vAA = 240
vQACC = 64
vFR = 96
vXLD, vWLD = 22, 24
vXRD = 26
vWA = 30
vACC = 8
vA = 40
vB = 128

def srd(a, s, lo, hi, off_sgpr, nbytes):
    a.e(f"s_add_u32 s{s}, s{lo}, s{off_sgpr}")
    a.e(f"s_addc_u32 s{s+1}, s{hi}, 0")
    a.e(f"s_mov_b32 s{s+2}, {nbytes:#x}")
    a.e(f"s_mov_b32 s{s+3}, 0x20000")

COST = {"v_exp_f32": 8, "v_rcp_f32": 8}
def cost(line):
    op = line.split()[0]
    if op.startswith("buffer_load"): return 16
    if op.startswith("s_"): return 2
    return COST.get(op, 4)

def gen(cfg):
    a = Asm()
    R = cfg.get("ring", 3); AHEAD = R - 1
    RING_BYTES = R * SLOT
    WARM = cfg.get("warm", 0)
    OB = cfg.get("ob", 1)
    HB = cfg.get("hb", 2)
    ST = cfg.get("stamp", 0)
    FL = lambda k, d="": (" " + cfg.get(k, d).replace("_", " ")).rstrip() if cfg.get(k, d) not in ("", "none") else ""
    fx, fwq, fwo, fost, fold, fout, ftch = FL("fx"), FL("fwq"), FL("fwo"), FL("fost", "sc1"), FL("fold", "sc1"), FL("fout"), FL("ftch")
    assert R == 3
    NI = 34
    LAST = (NI - 1) % R
    XSL = [x for x in range(R) if x != LAST]
    CS = [3, 4] + XSL
    SSLOT = LAST

    def stamp(idx):
        if not ST: return
        a.e("s_memrealtime s[74:75]"); a.e("s_waitcnt lgkmcnt(0)")
        if idx is not None: a.e(f"v_writelane_b32 v{vST}, s74, {idx}")
        else:
            a.e(f"s_add_u32 s76, s{sJ}, 8"); a.e(f"v_cmp_eq_u32 vcc, s76, v{vLANE}"); a.e("v_mov_b32 v31, s74"); a.e("s_nop 1")
            a.e(f"v_cndmask_b32 v{vST}, v{vST}, v31, vcc")
            a.e("s_memtime s[74:75]"); a.e("s_waitcnt lgkmcnt(0)"); a.e("v_mov_b32 v31, s74"); a.e("s_nop 1")
            a.e(f"v_cndmask_b32 v0, v0, v31, vcc")
    def cstamp(idx):
        if not ST: return
        a.e("s_memtime s[74:75]"); a.e("s_waitcnt lgkmcnt(0)"); a.e(f"v_writelane_b32 v{vST}, s74, {idx}")

    def item_lines(with_k=True, with_v=True, warm=True):
        L = []
        pre = []
        if warm and WARM:
            pre = [f"buffer_load_dwordx4 {vr(vDUM,4)}, v{vDO}, {sr(S_WO)}, s{sWARM} offen", f"s_add_u32 s{sWARM}, s{sWARM}, 16384"]
        L.append(pre + [f"s_add_u32 s{sT0}, s{sWR}, s{sW2K}", f"s_add_u32 s{sT1}, s{sT0}, 16384"])
        if with_k:
            L[-1] += [f"s_mov_b32 m0, s{sT0}", "s_nop 0", f"buffer_load_dwordx4 v{vKOFF0}, {sr(S_K)}, s{sTOFF} offen nt lds"]
            L.append([f"buffer_load_dwordx4 v{vKOFF1}, {sr(S_K)}, s{sTOFF} offen offset:1024 nt lds"])
        if with_v:
            L.append([f"s_mov_b32 m0, s{sT1}", f"s_sub_u32 s{sT2}, s{sTOFF}, 32768",
                      f"buffer_load_dwordx4 v{vVOFF}, {sr(S_V)}, s{sT2} offen nt lds"])
            L.append([f"buffer_load_dwordx4 v{vVOFF}, {sr(S_V)}, s{sT2} offen offset:1024 nt lds"])
        L[-1] += [f"s_add_u32 s{sWR}, s{sWR}, {SLOT}", f"s_add_u32 s{sTOFF}, s{sTOFF}, 16384",
                  f"s_cmp_ge_u32 s{sWR}, {RING_BYTES}", f"s_cselect_b32 s{sWR}, 0, s{sWR}"]
        return L
    def emit_groups(G):
        for g in G:
            for l in g: a.e(l)
    def item_cnt(n):
        return 2 if (n < 2 or n > 31) else 4
    def wo_chunk_lines(k, vdo):
        G = [[f"s_add_u32 s{sT0}, s{sW4K}, {CS[k % 4]*SLOT}", f"s_mov_b32 m0, s{sT0}",
              f"s_lshl_b32 s{sT1}, s{sHR}, 17", f"s_add_u32 s{sT1}, s{sT1}, {k*32768}", f"s_and_b32 s{sT1}, s{sT1}, 0x7ffff",
              f"buffer_load_dwordx4 v{vdo}, {sr(S_WO)}, s{sT1} offen{fwo} lds"]]
        for i in range(1, 4):
            G.append([f"buffer_load_dwordx4 v{vdo+i}, {sr(S_WO)}, s{sT1} offen offset:{i*1024}{fwo} lds"])
        return G

    a.L += [f".globl {NAME}", ".p2align 8", f".type {NAME},@function"]; a.label(NAME)
    a.e("s_cmp_ge_u32 s2, 256"); a.e("s_cbranch_scc1 L_end")
    a.e("s_load_dwordx16 s[4:19], s[0:1], 0")
    a.e("v_lshrrev_b32 v2, 6, v0")
    a.e(f"v_and_b32 v{vLANE}, 63, v0")
    a.e(f"v_readfirstlane_b32 s{sW}, v2")
    a.e(f"s_and_b32 s{sT0}, s2, 7"); a.e(f"s_lshr_b32 s{sT1}, s2, 3")
    a.e(f"s_and_b32 s{sT2}, s{sT1}, {(1<<HB)-1}")
    a.e(f"s_lshr_b32 s{sT3}, s{sT1}, {HB}")
    a.e(f"s_and_b32 s{sH}, s{sT0}, {(1<<(5-HB))-1}"); a.e(f"s_lshl_b32 s{sH}, s{sH}, {HB}"); a.e(f"s_add_u32 s{sH}, s{sH}, s{sT2}")
    a.e(f"s_lshr_b32 s{sB}, s{sT0}, {5-HB}"); a.e(f"s_lshl_b32 s{sB}, s{sB}, {5-HB}"); a.e(f"s_add_u32 s{sB}, s{sB}, s{sT3}")
    RA, RB = {2: (1, 2), 3: (2, 1), 4: (4, 1), 5: (0, 1)}[HB]
    a.e(f"s_mul_i32 s{sROT}, s{sT3}, {RA}"); a.e(f"s_mul_i32 s{sT2}, s{sT2}, {RB}"); a.e(f"s_add_u32 s{sROT}, s{sROT}, s{sT2}")
    a.e(f"s_and_b32 s{sQB}, s{sT1}, 3")
    a.e(f"s_lshr_b32 s{sT2}, s{sT1}, 2")
    a.e(f"s_and_b32 s{sNB}, s{sT2}, {(1<<(3-OB))-1}")
    a.e(f"s_lshr_b32 s{sT2}, s{sT2}, {3-OB}")
    a.e(f"s_and_b32 s{sB2}, s{sT0}, {(1<<(3-OB))-1}"); a.e(f"s_lshl_b32 s{sB2}, s{sB2}, {OB}"); a.e(f"s_add_u32 s{sB2}, s{sB2}, s{sT2}")
    a.e(f"s_lshr_b32 s{sT3}, s{sT0}, {3-OB}"); a.e(f"s_lshl_b32 s{sT3}, s{sT3}, {3-OB}"); a.e(f"s_add_u32 s{sNB}, s{sNB}, s{sT3}")
    if cfg.get("hrot", 1):
        a.e(f"s_add_u32 s{sHR}, s{sQB}, s{sNB}"); a.e(f"s_and_b32 s{sHR}, s{sHR}, 3")
    else:
        a.e(f"s_mov_b32 s{sHR}, 0")
    a.e(f"s_and_b32 s{sQG}, s{sW}, 3"); a.e(f"s_lshr_b32 s{sKH}, s{sW}, 2")
    a.e(f"s_lshl_b32 s{sW2K}, s{sW}, 11"); a.e(f"s_lshl_b32 s{sW4K}, s{sW}, 12")
    a.e(f"s_mov_b32 s{sC}, {f32bits(C_SCALE):#x}"); a.e(f"s_mov_b32 s{sNC}, {f32bits(-C_SCALE):#x}")
    t = [248, 249, 250, 251, 252, 253]
    l4, cpos, swz = t[0], t[1], t[2]
    a.e(f"v_lshrrev_b32 v{l4}, 4, v{vLANE}")
    a.e(f"v_and_b32 v{cpos}, 15, v{vLANE}")
    a.e(f"v_lshlrev_b32 v{swz}, 2, v{l4}")
    a.e(f"v_xor_b32 v{swz}, v{swz}, v{cpos}")
    a.e(f"v_lshlrev_b32 v{swz}, 4, v{swz}")
    a.e(f"v_lshl_add_u32 v{vWLD}, v{l4}, 13, v{swz}")
    a.e(f"s_lshl_b32 s{sT0}, s{sW}, 16")
    a.e(f"v_add_u32 v{vWLD}, s{sT0}, v{vWLD}")
    a.e(f"v_add_u32 v{vWLD+1}, {32768-1024}, v{vWLD}")
    l8, ch = t[3], t[4]
    a.e(f"v_lshrrev_b32 v{l8}, 3, v{vLANE}")
    a.e(f"v_and_b32 v{ch}, 7, v{vLANE}")
    a.e(f"v_lshrrev_b32 v{t[5]}, 1, v{l8}")
    a.e(f"v_xor_b32 v{t[5]}, v{t[5]}, v{ch}")
    a.e(f"v_lshlrev_b32 v{t[5]}, 4, v{t[5]}")
    a.e(f"v_lshl_add_u32 v{vXLD}, v{l8}, 10, v{t[5]}")
    a.e(f"s_lshl_b32 s{sT0}, s{sW}, 14")
    a.e(f"v_add_u32 v{vXLD}, s{sT0}, v{vXLD}")
    a.e(f"v_xor_b32 v{vXLD+1}, 64, v{vXLD}")
    a.e(f"v_add_u32 v{vXLD+1}, {8192-1024}, v{vXLD+1}")
    a.e("s_waitcnt lgkmcnt(0)")
    if ST: a.e(f"v_mov_b32 v{vST}, 0")
    stamp(0)
    a.e(f"s_lshl_b32 s{sT1}, s{sH}, 8")
    srd(a, S_WQ, 10, 11, sT1, 0x400000 - 31 * 256)
    a.e(f"s_lshl_b32 s{sT1}, s{sB}, 17")
    srd(a, S_X, 4, 5, sT1, 0x20000)
    def S_lines(st):
        slot = 1 + st % 4
        return [[f"s_add_u32 s{sT2}, s{sROT}, {st}", f"s_and_b32 s{sT2}, s{sT2}, 7",
                 f"s_add_u32 s{sT3}, s{sW2K}, {slot*SLOT}", f"s_mov_b32 m0, s{sT3}",
                 f"s_lshl_b32 s{sT0}, s{sT2}, 19", f"s_lshl_b32 s{sT2}, s{sT2}, 7",
                 f"buffer_load_dwordx4 v{vXLD}, {sr(S_X)}, s{sT2} offen{fx} lds"],
                [f"buffer_load_dwordx4 v{vXLD+1}, {sr(S_X)}, s{sT2} offen offset:1024{fx} lds"],
                [f"s_add_u32 s{sT3}, s{sT3}, 16384", f"s_mov_b32 m0, s{sT3}", "s_nop 0",
                 f"buffer_load_dwordx4 v{vWLD}, {sr(S_WQ)}, s{sT0} offen{fwq} lds"],
                [f"buffer_load_dwordx4 v{vWLD+1}, {sr(S_WQ)}, s{sT0} offen offset:1024{fwq} lds"]]
    for st in range(2): emit_groups(S_lines(st))
    a.e(f"v_lshl_add_u32 v{vVOFF}, v{l4}, 8, v{swz}")
    a.e(f"v_add_u32 v{vVOFF}, s{sW2K}, v{vVOFF}")
    a.e(f"s_lshl_b32 s{sT0}, s{sW}, 3"); a.e(f"s_and_b32 s{sT0}, s{sT0}, 8")
    a.e(f"v_add_u32 v{t[5]}, s{sT0}, v{l4}")
    a.e(f"v_xor_b32 v{t[5]}, v{t[5]}, v{cpos}")
    a.e(f"v_lshlrev_b32 v{t[5]}, 4, v{t[5]}")
    a.e(f"v_lshl_add_u32 v{vKOFF0}, v{l4}, 8, v{t[5]}")
    a.e(f"v_add_u32 v{vKOFF0}, s{sW2K}, v{vKOFF0}")
    a.e(f"v_xor_b32 v{vKOFF1}, 64, v{vKOFF0}")
    a.e(f"v_and_b32 v{t[5]}, 1, v{l4}")
    a.e(f"v_lshlrev_b32 v{t[5]}, 2, v{t[5]}")
    a.e(f"v_xor_b32 v{t[5]}, v{t[5]}, v{ch}")
    a.e(f"v_lshlrev_b32 v{t[5]}, 4, v{t[5]}")
    a.e(f"v_lshl_add_u32 v{vDO}, v{l8}, 10, v{t[5]}")
    for i in range(1, 4): a.e(f"v_add_u32 v{vDO+i}, {i*(8192-1024)}, v{vDO}")
    a.e(f"s_lshl_b32 s{sT0}, s{sB}, 5"); a.e(f"s_add_u32 s{sT0}, s{sT0}, s{sH}"); a.e(f"s_lshl_b32 s{sT1}, s{sT0}, 19")
    srd(a, S_K, 6, 7, sT1, 0x80000)
    srd(a, S_V, 8, 9, sT1, 0x80000)
    a.e(f"s_mov_b32 s{sTOFF}, 0"); a.e(f"s_mov_b32 s{sWR}, 0"); a.e(f"s_mov_b32 s{sNEG}, {SLOT - RING_BYTES}")
    a.e(f"s_lshl_b32 s{sT1}, s{sB}, 21"); a.e(f"s_lshl_b32 s{sT0}, s{sH}, 13"); a.e(f"s_add_u32 s{sT1}, s{sT1}, s{sT0}")
    srd(a, S_O, 18, 19, sT1, 3 * 262144 + 8192)
    a.e(f"s_lshl_b32 s{sT1}, s{sB2}, 21"); a.e(f"s_lshl_b32 s{sT0}, s{sQB}, 18"); a.e(f"s_add_u32 s{sT1}, s{sT1}, s{sT0}")
    a.e(f"s_lshl_b32 s{sT0}, s{sW}, 15"); a.e(f"s_add_u32 s{sT1}, s{sT1}, s{sT0}")
    srd(a, S_OL, 18, 19, sT1, 32768)
    a.e(f"s_lshl_b32 s{sT0}, s{sW}, 19"); a.e(f"s_lshl_b32 s{sT1}, s{sNB}, 7"); a.e(f"s_add_u32 s{sT0}, s{sT0}, s{sT1}")
    srd(a, S_WO, 12, 13, sT0, 511 * 1024 + 128)
    a.e(f"s_lshl_b32 s{sT0}, s{sB2}, 17"); a.e(f"s_lshl_b32 s{sT1}, s{sQB}, 15"); a.e(f"s_add_u32 s{sT0}, s{sT0}, s{sT1}")
    a.e(f"s_lshl_b32 s{sT1}, s{sNB}, 7"); a.e(f"s_add_u32 s{sT0}, s{sT0}, s{sT1}")
    srd(a, S_OUT, 14, 15, sT0, 31 * 1024 + 128)
    a.e(f"s_mov_b32 s{S_DBG}, s16"); a.e(f"s_mov_b32 s{S_DBG+1}, s17"); a.e(f"s_mov_b32 s{S_DBG+2}, 256"); a.e(f"s_mov_b32 s{S_DBG+3}, 0x20000")
    a.e(f"s_and_b32 s{sWARM}, s{sQB}, 1"); a.e(f"s_add_u32 s{sWARM}, s{sWARM}, 8"); a.e(f"s_lshl_b32 s{sWARM}, s{sWARM}, 13")
    for st in range(2, 4): emit_groups(S_lines(st))
    emit_groups(item_lines(with_v=False, warm=False))
    a.e(f"buffer_load_dword v{vDUM}, v{vVOFF}, {sr(S_V)}, 0 offen nt")

    r, c, g, hi, lo = t[0], t[1], t[2], t[3], t[4]
    a.e(f"v_bfe_u32 v{r}, v{vLANE}, 2, 2")
    a.e(f"v_and_b32 v{c}, 3, v{vLANE}")
    a.e(f"v_bfe_u32 v{g}, v{vLANE}, 4, 1")
    a.e(f"v_lshrrev_b32 v{hi}, 5, v{vLANE}")
    a.e(f"v_lshlrev_b32 v{lo}, 3, v{c}")
    a.e(f"v_lshl_add_u32 v{lo}, v{g}, 5, v{lo}")
    for tt in range(2):
        a.e(f"s_lshl_b32 s{sT0}, s{sKH}, 1"); a.e(f"s_add_u32 s{sT0}, s{sT0}, {tt}")
        a.e(f"v_xor_b32 v{vWA+tt}, s{sT0}, v{r}")
        a.e(f"v_lshl_add_u32 v{vWA+tt}, v{vWA+tt}, 6, v{lo}")
        a.e(f"v_lshl_add_u32 v{vWA+tt}, v{r}, 8, v{vWA+tt}")
        a.e(f"v_lshl_add_u32 v{vWA+tt}, v{hi}, 11, v{vWA+tt}")
        a.e(f"v_add_u32 v{vWA+tt}, 16384, v{vWA+tt}")
    for aa in range(4):
        a.e(f"s_lshl_b32 s{sT0}, s{sKH}, 1"); a.e(f"s_xor_b32 s{sT0}, s{sT0}, {aa}")
        a.e(f"v_xor_b32 v{vVA+aa}, s{sT0}, v{r}")
        a.e(f"v_lshl_add_u32 v{vVA+aa}, v{vVA+aa}, 6, v{lo}")
        a.e(f"v_lshl_add_u32 v{vVA+aa}, v{r}, 8, v{vVA+aa}")
        a.e(f"v_lshl_add_u32 v{vVA+aa}, v{hi}, 10, v{vVA+aa}")
        a.e(f"s_lshl_b32 s{sT0}, s{sKH}, 13"); a.e(f"s_add_u32 s{sT0}, s{sT0}, 16384")
        a.e(f"v_add_u32 v{vVA+aa}, s{sT0}, v{vVA+aa}")
    a.e(f"v_lshrrev_b32 v{t[5]}, 1, v{r}")
    for u in range(2):
        a.e(f"v_xor_b32 v{vAA+u}, {u}, v{t[5]}")
        a.e(f"v_lshl_add_u32 v{vAA+u}, v{vAA+u}, 6, v{lo}")
        a.e(f"v_lshl_add_u32 v{vAA+u}, v{r}, 7, v{vAA+u}")
        a.e(f"v_lshl_add_u32 v{vAA+u}, v{hi}, 9, v{vAA+u}")
        a.e(f"v_add_u32 v{vAA+u}, s{sW4K}, v{vAA+u}")
    a.e(f"v_bfe_u32 v{r}, v{vLANE}, 1, 3")
    a.e(f"v_xor_b32 v{r}, v{r}, v{hi}")
    a.e(f"v_lshlrev_b32 v{r}, 4, v{r}")
    a.e(f"v_and_b32 v{c}, 31, v{vLANE}")
    a.e(f"v_lshl_add_u32 v{r}, v{c}, 7, v{r}")
    a.e(f"s_lshl_b32 s{sT0}, s{sQG}, 12")
    a.e(f"v_add_u32 v{r}, s{sT0}, v{r}")
    for sp in range(4): a.e(f"v_xor_b32 v{vXRD+sp}, {sp<<5}, v{r}")
    a.e(f"v_and_b32 v{r}, 15, v{vLANE}")
    a.e(f"v_xor_b32 v{r}, v{r}, v{hi}")
    a.e(f"v_lshlrev_b32 v{r}, 4, v{r}")
    a.e(f"v_lshl_add_u32 v{r}, v{c}, 8, v{r}")
    a.e(f"s_lshl_b32 s{sT0}, s{sKH}, 13")
    a.e(f"s_lshl_b32 s{sT1}, s{sKH}, 7")
    a.e(f"v_xor_b32 v{r}, s{sT1}, v{r}")
    a.e(f"v_add_u32 v{r}, s{sT0}, v{r}")
    for s_ in range(8): a.e(f"v_xor_b32 v{vKA+s_}, {s_<<5}, v{r}")
    stamp(1)

    order = ["S0", "S1", "S2", "S3", "T0", "S4", "S5", "S6", "S7", "T1", "T2", "N0"]
    cnt = {n: (4 if n[0] == "S" else 0 if n[0] == "N" else item_cnt(int(n[1]))) for n in order}
    cnt["T0"] += 1
    cur_hi = [0]
    def frag_regs(st, sp):
        b = vFR + (st % 2) * 48 + sp * 12
        return b, b + 4, b + 8
    def read_ops(st):
        base = ((1 + st % 4) * SLOT) & 0xffff
        ops = []
        for sp in range(4):
            xb, w0, w1 = frag_regs(st, sp)
            ops.append(f"ds_read_b128 {vr(xb,4)}, v{vXRD+sp} offset:{base}")
            for tt, b in ((0, w0), (1, w1)):
                ops.append(f"ds_read_b64_tr_b16 {vr(b,2)}, v{vWA+tt} offset:{base+sp*4096}")
                ops.append(f"ds_read_b64_tr_b16 {vr(b+2,2)}, v{vWA+tt} offset:{base+sp*4096+1024}")
        return ops
    def set_hi(st):
        hi_add = ((1 + st % 4) * SLOT) & ~0xffff
        if hi_add != cur_hi[0]:
            a.e(f"s_mov_b32 s{sT0}, {hi_add - cur_hi[0]}")
            for rr in [vXRD, vXRD + 1, vXRD + 2, vXRD + 3, vWA, vWA + 1]:
                a.e(f"v_add_u32 v{rr}, s{sT0}, v{rr}")
            cur_hi[0] = hi_add
    def sync_step(st):
        issued = 5 + max(st - 1, 0)
        idx = order.index(f"S{st}")
        after = sum(cnt[n] for n in order[idx + 1:issued])
        a.e(f"s_waitcnt vmcnt({after}) lgkmcnt(0)")
        a.e("s_barrier")
        if st == 0: stamp(2); cstamp(52)
        if st == 4: stamp(3)
    def next_groups(st):
        n = order[4 + st]
        if n[0] == "S": return S_lines(int(n[1]))
        if n[0] == "N": return []
        return item_lines(with_v=int(n[1]) >= 2, warm=False)
    sync_step(0)
    ops = read_ops(0)
    for o in ops[:15]: a.e(o)
    a.e("s_waitcnt lgkmcnt(8)")
    for o in ops[15:]: a.e(o)
    for st in range(8):
        ops = []; dma = []
        if st < 7:
            set_hi(st + 1)
            sync_step(st + 1)
            ops = read_ops(st + 1)
            dma = next_groups(st + 1)
        else:
            a.e("s_waitcnt lgkmcnt(0)")
            a.e("s_barrier")
        for sp in range(4):
            xb, w0, w1 = frag_regs(st, sp)
            ks = st * 4 + sp
            for tt, b in ((0, w0), (1, w1)):
                cin = "0" if ks == 0 else vr(vQACC + 16 * tt, 16)
                a.e(f"v_mfma_f32_32x32x16_bf16 {vr(vQACC+16*tt,16)}, {vr(b,4)}, {vr(xb,4)}, {cin}")
                m = sp * 2 + tt
                nrd = 4 if m < 4 else 2
                if ops and m >= 3: a.e("s_waitcnt lgkmcnt(10)")
                for o in ops[:nrd]: a.e(o)
                ops = ops[nrd:]
                if dma and m >= 1:
                    for l in dma.pop(0): a.e(l)
                if st == 7:
                    for i in range(8): a.e(f"v_mov_b32 v{vO+32+8*(m%4)+i}, 0") if m < 4 else None
        assert not ops and not dma
    stamp(4); cstamp(53)
    xa = vTMP
    a.e(f"s_lshl_b32 s{sT0}, s{sW}, 12"); a.e(f"s_add_u32 s{sT0}, s{sT0}, {4*SLOT}")
    a.e(f"v_lshlrev_b32 v{xa}, 4, v{vLANE}")
    a.e(f"v_add_u32 v{xa}, s{sT0}, v{xa}")
    a.e(f"v_xor_b32 v{xa+1}, 16384, v{xa}")
    a.e(f"v_mov_b32 v{vM}, 0xff800000")
    a.e(f"v_mov_b32 v{vNM}, 0x7f800000")
    a.e(f"v_mov_b32 v{vL}, 0")
    a.e(f"s_mov_b32 s{sJ}, 0"); a.e(f"s_mov_b32 s{sRD}, 0")
    a.nop(3)
    for f in range(4):
        tt, j = f >> 1, f & 1
        q = vQ + f * 4
        src = vQACC + 16 * tt + 8 * j
        for i in range(4):
            a.e(f"v_cvt_pk_bf16_f32 v{q+i}, v{src+2*i}, v{src+2*i+1}")
        if f >= 1:
            qq = vQ + (f - 1) * 4
            a.e(f"v_permlane32_swap_b32 v{qq}, v{qq+2}")
            a.e(f"v_permlane32_swap_b32 v{qq+1}, v{qq+3}")
            a.e(f"ds_write_b128 v{xa}, {vr(qq,4)} offset:{(f-1)*1024}")
    a.e(f"v_permlane32_swap_b32 v{vQ+12}, v{vQ+14}")
    a.e(f"v_permlane32_swap_b32 v{vQ+13}, v{vQ+15}")
    a.e(f"ds_write_b128 v{xa}, {vr(vQ+12,4)} offset:3072")
    for i in range(32): a.e(f"v_mov_b32 v{vO+i}, 0")
    a.e(f"s_waitcnt vmcnt({item_cnt(1)+item_cnt(2)}) lgkmcnt(0)"); a.e("s_barrier")
    for f in range(4):
        a.e(f"ds_read_b128 {vr(vQ+16+4*f,4)}, v{xa+1} offset:{f*1024}")
    for s_ in range(8):
        a.e(f"ds_read_b128 {vr(vKF+4*s_,4)}, v{vKA+s_}")
    for s_ in range(8): a.e(f"v_add_u32 v{vKA+s_}, {SLOT}, v{vKA+s_}")
    for aa in range(4): a.e(f"v_add_u32 v{vVA+aa}, {SLOT}, v{vVA+aa}")
    a.e(f"s_mov_b32 s{sRD}, {SLOT}")
    stamp(6); cstamp(50)

    t2, al = vTMP, vTMP + 1
    vorder = [(j, aa) for j in range(2) for aa in range(4)]
    def iteration(par, do_qk, do_pv, do_kr, wait, issue, tag, extra=None):
        Sn, Sp = vS[par], vS[1 - par]
        a.lds_seq = 0
        a.e(f"s_waitcnt vmcnt({wait}) lgkmcnt(0)")
        a.e("s_barrier")
        if ST >= 2: stamp(None)
        if ST == 1 and tag in ("p29", "p32"): cstamp(54 if tag == "p29" else 55)
        G = []
        if issue: G += issue
        F1 = []
        if do_pv:
            F1.append(f"v_fma_f32 v{Sp}, v{Sp}, s{sC}, v{vNM}")
            for e_ in range(16):
                if e_ + 1 < 16: F1.append(f"v_fma_f32 v{Sp+e_+1}, v{Sp+e_+1}, s{sC}, v{vNM}")
                F1.append(f"v_exp_f32 v{Sp+e_}, v{Sp+e_}")
                if e_ >= 2 and e_ % 2 == 0:
                    p = e_ // 2 - 1
                    F1.append(f"v_cvt_pk_bf16_f32 v{vP+p}, v{Sp+2*p}, v{Sp+2*p+1}")
            F1.append(f"v_add_f32 v{t2}, v{Sp}, v{Sp+1}")
            F1.append(f"v_cvt_pk_bf16_f32 v{vP+7}, v{Sp+14}, v{Sp+15}")
        vtok = {}
        def vread(idx):
            j, aa = vorder[idx]
            b = vVF + idx * 4
            a.lds(f"ds_read_b64_tr_b16 {vr(b,2)}, v{vVA+aa} offset:{j*4096}")
            vtok[(j, aa)] = a.lds(f"ds_read_b64_tr_b16 {vr(b+2,2)}, v{vVA+aa} offset:{j*4096+2048}")
        def drain(F, budget):
            used = 0
            while F and used < budget:
                l = F.pop(0); a.e(l); used += cost(l)
        DM = cfg.get("dmapos", 0)
        if do_qk:
            for s_ in range(8):
                cin = "0" if s_ == 0 else vr(Sn, 16)
                a.e(f"v_mfma_f32_32x32x16_bf16 {vr(Sn,16)}, {vr(vKF+4*s_,4)}, {vr(vQ+4*s_,4)}, {cin}")
                if G and s_ >= DM:
                    for l in G.pop(0): a.e(l)
                if do_pv:
                    if s_ == 7: a.e("s_waitcnt lgkmcnt(13)")
                    vread(s_)
                    drain(F1, cfg.get("gap1", 24))
        else:
            for idx in range(7): vread(idx)
            emit_groups(G); G = []
            drain(F1, 64)
            a.e("s_waitcnt lgkmcnt(13)")
            vread(7)
        emit_groups(G)
        if extra: extra()
        a.e(f"s_add_u32 s{sRD}, s{sRD}, {SLOT}")
        a.e(f"s_cmp_ge_u32 s{sRD}, {RING_BYTES}")
        a.e(f"s_cselect_b32 s{sDELTA}, s{sNEG}, {SLOT}")
        a.e(f"s_cselect_b32 s{sRD}, 0, s{sRD}")
        drain(F1, 10000)
        F2 = []
        if do_pv:
            for i in range(2, 16, 2):
                F2.append(f"v_add_f32 v{vL}, v{vL}, v{Sp+i}")
                F2.append(f"v_add_f32 v{t2}, v{t2}, v{Sp+i+1}")
            F2.append(f"v_add_f32 v{vL}, v{vL}, v{t2}")
        for aa in range(4): F2.append(f"v_add_u32 v{vVA+aa}, s{sDELTA}, v{vVA+aa}")
        F3 = []
        if do_qk:
            F3.append(f"v_max3_f32 v{vMT}, v{Sn}, v{Sn+1}, v{Sn+2}")
            for i in range(3, 15, 2):
                F3.append(f"v_max3_f32 v{vMT}, v{Sn+i}, v{Sn+i+1}, v{vMT}")
            F3.append(f"v_max_f32 v{vMT}, v{Sn+15}, v{vMT}")
            F3.append(f"v_fma_f32 v{al}, v{vMT}, s{sC}, v{vNM}")
            F3.append(f"v_cmp_lt_f32 vcc, 0x41000000, v{al}")
        def kread(s_):
            a.lds(f"ds_read_b128 {vr(vKF+4*s_,4)}, v{vKA+s_}")
            a.e(f"v_add_u32 v{vKA+s_}, s{sDELTA}, v{vKA+s_}")
        if do_pv:
            drain(F2, 8)
            for idx in range(8):
                j, aa = vorder[idx]
                a.wait_lds(vtok[(j, aa)])
                a.e(f"v_mfma_f32_32x32x16_bf16 {vr(vO+16*aa,16)}, {vr(vVF+4*idx,4)}, {vr(vP+4*j,4)}, {vr(vO+16*aa,16)}")
                if do_kr and idx < 6:
                    kread(idx)
                    if idx >= 4: kread(idx + 2)
                if idx == 7: break
                if F2: drain(F2, cfg.get("gap2", 16))
                elif idx >= 3: drain(F3, cfg.get("gap2", 16))
            drain(F2, 10000)
        else:
            if do_kr:
                for s_ in range(8): kread(s_)
            drain(F2, 10000)
        drain(F3, 10000)
        a.e(f"s_add_u32 s{sJ}, s{sJ}, 1")
        if do_qk:
            a.e(f"s_cbranch_vccnz L_resc_{tag}")
            a.label(f"L_back_{tag}")
    def rescale_block(tag):
        a.label(f"L_resc_{tag}")
        a.e(f"v_mov_b32 v{t2}, v{vMT}")
        a.nop(2)
        a.e(f"v_permlane32_swap_b32 v{vMT}, v{t2}")
        a.e(f"v_max3_f32 v{vMT}, v{vMT}, v{t2}, v{vM}")
        a.e(f"v_sub_f32 v{al}, v{vM}, v{vMT}")
        a.e(f"v_mul_f32 v{al}, s{sC}, v{al}")
        a.e(f"v_exp_f32 v{al}, v{al}")
        a.e(f"v_mov_b32 v{vM}, v{vMT}")
        a.e(f"v_mul_f32 v{vNM}, s{sNC}, v{vMT}")
        a.nop(6)
        a.e(f"v_mul_f32 v{vL}, v{vL}, v{al}")
        for i in range(64): a.e(f"v_mul_f32 v{vO+i}, v{vO+i}, v{al}")
        a.e(f"s_branch L_back_{tag}")
    def wait_for(i):
        return sum(item_cnt(n) for n in range(i + 2, min(i + 1 + AHEAD, NI)))
    def issue_for(i):
        n = i + 1 + AHEAD
        if n >= NI: return None
        return item_lines(with_k=(n < 32), warm=False)
    def touches():
        if not cfg.get("touch", 1): return
        ta = vTMP + 4
        a.e(f"s_lshl_b32 s{sT0}, s{sB}, 21"); a.e(f"s_add_u32 s{sT0}, s{sT0}, {(1<<20)+65536}")
        a.e(f"v_mov_b32 v{ta}, s{sT0}")
        a.e(f"s_lshl_b32 s{sT0}, s{sB2}, 21"); a.e(f"s_add_u32 s{sT0}, s{sT0}, {(1<<20)+65536}")
        a.e(f"v_mov_b32 v{ta+1}, s{sT0}")
        a.e(f"v_mov_b32 v{ta+2}, 0")
        a.e(f"global_load_dword v{vDUM}, v{ta}, s[18:19]{ftch}")
        a.e(f"global_load_dword v{vDUM}, v{ta+1}, s[18:19]{ftch}")
        a.e(f"buffer_load_dword v{vDUM}, v{ta+2}, {sr(S_OUT)}, 0 offen{ftch}")
        a.e(f"buffer_load_dword v{vDUM}, v{ta+2}, {sr(S_DBG)}, 0 offen sc1")
    E0, E1 = cfg.get("e0", 25), cfg.get("e1", 26)
    PEEL = cfg.get("peel", 25)
    assert PEEL % 2 == 1 and E0 >= PEEL and E1 > E0
    NT = 4 if cfg.get("touch", 1) else 0
    extra_ops = {E0: 4 + NT, E1: 4}
    def wait_exact(i):
        w_ = wait_for(i)
        for j in range(i - AHEAD, i):
            w_ += extra_ops.get(j, 0)
        return w_
    iteration(0, True, False, True, wait_for(0), issue_for(0), "i0")
    a.L.append(".p2align 6")
    a.label("L_loop")
    iteration(1, True, True, True, wait_for(1), issue_for(1), "a")
    iteration(0, True, True, True, wait_for(2), issue_for(2), "b")
    a.e(f"s_cmp_lt_u32 s{sJ}, {PEEL}"); a.e("s_cbranch_scc1 L_loop")
    tags = ["i0", "a", "b"]
    for i in range(PEEL, 33):
        ex = None
        if i == E0: ex = lambda: (emit_groups(wo_chunk_lines(0, vDO)), touches())
        if i == E1: ex = lambda: emit_groups(wo_chunk_lines(1, vDO))
        iteration(i % 2, i < 32, True, i < 31, wait_exact(i) if i < 32 else 0, issue_for(i), f"p{i}", extra=ex)
        if i < 32: tags.append(f"p{i}")
    a.e("s_branch L_loopdone")
    for tag in tags: rescale_block(tag)
    a.label("L_loopdone")
    stamp(41); cstamp(51)

    mx = vTMP + 2; ea = vTMP + 4; mp = vTMP + 8
    a.e(f"v_mov_b32 v{t2}, v{vL}")
    a.e(f"v_lshlrev_b32 v{ea}, 4, v{vLANE}")
    a.e(f"s_lshl_b32 s{sT0}, s{sQG}, 13")
    a.e(f"v_permlane32_swap_b32 v{vL}, v{t2}")
    a.e(f"v_add_u32 v{ea}, s{sT0}, v{ea}")
    a.e(f"v_add_f32 v{vL}, v{vL}, v{t2}")
    a.e(f"s_cmp_eq_u32 s{sKH}, 0")
    a.e(f"s_mov_b32 s{sT2}, {XSL[1]*SLOT}")
    a.e(f"s_cselect_b32 s{sT0}, {XSL[0]*SLOT}, s{sT2}")
    a.e(f"s_cselect_b32 s{sT1}, s{sT2}, {XSL[0]*SLOT}")
    a.e(f"v_add_u32 v{ea+1}, s{sT1}, v{ea}")
    a.e(f"v_add_u32 v{ea}, s{sT0}, v{ea}")
    a.e(f"v_lshlrev_b32 v{ea+2}, 3, v{vLANE}")
    a.e(f"s_lshl_b32 s{sT0}, s{sW}, 9"); a.e(f"s_add_u32 s{sT0}, s{sT0}, {SSLOT*SLOT}")
    a.e(f"v_add_u32 v{ea+2}, s{sT0}, v{ea+2}")
    a.e(f"v_xor_b32 v{ea+3}, 2048, v{ea+2}")
    a.e(f"v_mov_b32 v{mx}, v{vM}"); a.e(f"v_mov_b32 v{mx+1}, v{vL}")
    a.e(f"ds_write_b64 v{ea+2}, {vr(mx,2)}")
    for i in range(8):
        a.e(f"ds_write_b128 v{ea}, {vr(vO+32+4*i,4)} offset:{i*1024}")
    a.e("s_waitcnt lgkmcnt(0)"); a.e("s_barrier")
    a.e(f"ds_read_b64 {vr(mp,2)}, v{ea+3}")
    for i in range(8):
        a.e(f"ds_read_b128 {vr(vKF+4*i,4)}, v{ea+1} offset:{i*1024}")
    a.e("s_waitcnt lgkmcnt(8)")
    mt, ws_, wp = vTMP, vTMP + 1, vTMP + 2
    a.e(f"v_max_f32 v{mt}, v{vM}, v{mp}")
    a.e(f"v_sub_f32 v{ws_}, v{vM}, v{mt}")
    a.e(f"v_sub_f32 v{wp}, v{mp}, v{mt}")
    a.e(f"v_mul_f32 v{ws_}, s{sC}, v{ws_}")
    a.e(f"v_mul_f32 v{wp}, s{sC}, v{wp}")
    a.e(f"v_exp_f32 v{ws_}, v{ws_}")
    a.e(f"v_exp_f32 v{wp}, v{wp}")
    a.e(f"s_lshl_b32 s{sT0}, s{sQG}, 18"); a.e(f"s_lshl_b32 s{sT1}, s{sKH}, 12"); a.e(f"s_add_u32 s{sT2}, s{sT0}, s{sT1}")
    a.e(f"v_mul_f32 v{mt}, v{vL}, v{ws_}")
    a.e(f"v_fma_f32 v{mt}, v{mp+1}, v{wp}, v{mt}")
    a.e(f"v_rcp_f32 v{mt}, v{mt}")
    a.e(f"v_lshlrev_b32 v{ea}, 4, v{vLANE}")
    a.e(f"v_mul_f32 v{ws_}, v{ws_}, v{mt}")
    a.e(f"v_mul_f32 v{wp}, v{wp}, v{mt}")
    for i in range(32):
        a.e(f"v_mul_f32 v{vO+i}, v{vO+i}, v{ws_}")
    for f in range(4):
        a.e(f"s_waitcnt lgkmcnt({6-2*f})")
        for i in range(8 * f, 8 * f + 8):
            a.e(f"v_fma_f32 v{vO+i}, v{vKF+i}, v{wp}, v{vO+i}")
        for i in range(4 * f, 4 * f + 4):
            a.e(f"v_cvt_pk_bf16_f32 v{vVF+i}, v{vO+2*i}, v{vO+2*i+1}")
        a.e(f"buffer_store_dwordx4 {vr(vVF+4*f,4)}, v{ea}, {sr(S_O)}, s{sT2} offen offset:{f*1024}{fost}")
    stamp(42)
    tDO, tAA, tBO, tF = 2, 120, 6, 126
    tFL = 0
    FLAGLDS = SSLOT * SLOT + 8192
    for i in range(4): a.e(f"v_mov_b32 v{tDO+i}, v{vDO+i}")
    for win in range(3):
        for u in range(2):
            a.e(f"v_add_u32 v{tAA+2*win+u}, {win*65536}, v{vAA+u}")
    def a_reads(k):
        so = CS[k % 4] * SLOT
        win, base = so >> 16, so & 0xffff
        fb = vA + (k % 5) * 16
        for jj in range(2):
            for u in range(2):
                b = fb + (jj * 2 + u) * 4
                a.e(f"ds_read_b64_tr_b16 {vr(b,2)}, v{tAA+2*win+u} offset:{base+jj*2048}")
                a.e(f"ds_read_b64_tr_b16 {vr(b+2,2)}, v{tAA+2*win+u} offset:{base+jj*2048+1024}")
    a_reads(0)
    a.e("s_waitcnt lgkmcnt(4)")
    a_reads(1)
    tFA = vACC + 2
    a.e(f"v_lshlrev_b32 v{tBO}, 4, v{vLANE}")
    a.e(f"v_and_b32 v{tFA}, 7, v{vLANE}")
    a.e(f"v_lshlrev_b32 v{tFA}, 2, v{tFA}")
    a.e(f"v_add_u32 v{tF+1}, {FLAGLDS}, v{tFA}")
    a.e(f"s_lshl_b32 s{sT0}, s{sB2}, 5")
    a.e(f"v_add_u32 v{vACC+3}, s{sT0}, v{tFA}")
    a.e(f"s_lshl_b32 s{sT0}, s{sW}, 2"); a.e(f"s_add_u32 s{sT0}, s{sT0}, {FLAGLDS}")
    a.e(f"v_mov_b32 v{vACC+4}, s{sT0}")
    a.e(f"v_mov_b32 v{tF}, 0")
    a.e(f"ds_write_b32 v{tF+1}, v{tF}")
    a.e("s_waitcnt lgkmcnt(0)")
    emit_groups(wo_chunk_lines(4, tDO)); emit_groups(wo_chunk_lines(5, tDO))
    a.e("s_waitcnt vmcnt(8)")
    a.e("s_barrier")
    a.e(f"s_cmp_lg_u32 s{sW}, 0"); a.e("s_cbranch_scc1 L_noflag")
    a.e(f"s_lshl_b32 s{sT0}, s{sB}, 5"); a.e(f"s_add_u32 s{sT0}, s{sT0}, s{sH}")
    a.e(f"v_mov_b32 v{tF}, 1"); a.e(f"v_mov_b32 v{vACC}, s{sT0}")
    a.e("s_mov_b64 exec, 1")
    a.e(f"buffer_store_byte v{tF}, v{vACC}, {sr(S_DBG)}, 0 offen sc1")
    a.e("s_mov_b64 exec, -1")
    a.label("L_noflag")
    stamp(43)
    emit_groups(wo_chunk_lines(2, tDO)); emit_groups(wo_chunk_lines(3, tDO))
    for k, w_, nxt in ((4, 12, 8), (2, 8, 6), (3, 8, 7)):
        a.e(f"s_waitcnt vmcnt({w_})")
        a_reads(k)
        a.e("s_waitcnt lgkmcnt(0)")
        emit_groups(wo_chunk_lines(nxt, tDO))
    stamp(44)
    vFG, vFR_ = vACC + 3, vACC + 4
    def poll(first=False):
        lo_ = a.newlabel("L_pl"); lj = a.newlabel("L_pj")
        a.e(f"s_cmp_lg_u32 s{sW}, 0"); a.e(f"s_cbranch_scc1 {lo_}")
        if not first: a.e(f"s_sleep {cfg.get('psleep', 4)}")
        a.e(f"buffer_load_dword v{tF}, v{vFG}, {sr(S_DBG)}, 0 offen sc1")
        a.e("s_waitcnt vmcnt(0)")
        a.e(f"ds_write_b32 v{tF+1}, v{tF}")
        a.e(f"v_cmp_eq_u32 s[86:87], v{tF}, v{vACC+1}")
        a.e(f"s_branch {lj}")
        a.label(lo_)
        if not first: a.e("s_sleep 1")
        a.e(f"ds_read_b32 v{tF}, v{vFR_}")
        a.e("s_waitcnt lgkmcnt(0)")
        a.label(lj)
        a.e(f"v_alignbyte_b32 v{tF}, v{tF}, v{tF}, s{sHR}")
        a.e("s_nop 0")
        a.e(f"v_readfirstlane_b32 s{sF}, v{tF}")
        a.e("s_nop 1")
    a.e(f"v_mov_b32 v{vACC+1}, 0x01010101")
    a.e("s_mov_b64 s[86:87], -1")
    poll(True)
    for hh in range(4):
        a.label(f"L_p{hh}")
        a.e(f"s_and_b32 s{sT0}, s{sF}, {0xff << (8*hh):#x}")
        a.e(f"s_cbranch_scc1 L_go{hh}")
        poll()
        a.e(f"s_branch L_p{hh}")
        a.label(f"L_go{hh}")
        a.e(f"s_add_u32 s{sT1}, s{sHR}, {hh}"); a.e(f"s_and_b32 s{sT1}, s{sT1}, 3"); a.e(f"s_lshl_b32 s{sT1}, s{sT1}, 13")
        a.e(f"s_add_u32 s{sT2}, s{sT1}, 4096")
        for i in range(8):
            ks = hh * 8 + i
            a.e(f"buffer_load_dwordx4 {vr(vB+4*ks,4)}, v{tBO}, {sr(S_OL)}, s{sT1 if i < 4 else sT2} offen offset:{(i%4)*1024}{fold}")
    a.label("L_pall")
    a.e("s_cmp_eq_u64 s[86:87], -1"); a.e("s_cbranch_scc1 L_palldone")
    poll()
    a.e("s_branch L_pall")
    a.label("L_palldone")
    a.e("s_waitcnt lgkmcnt(0)")
    stamp(45)
    ndma = 0
    for k in range(16):
        if k >= 1 and k + 4 <= 15: a.e("s_waitcnt lgkmcnt(0)")
        if k >= 1 and k + 8 <= 15:
            emit_groups(wo_chunk_lines(k + 8, tDO)); ndma += 1
        a.e(f"s_waitcnt vmcnt({min(63, 31 - (2*k+1) + 4*ndma)})")
        fb = vA + (k % 5) * 16
        for jj in range(2):
            ks = 2 * k + jj
            for u in range(2):
                b = fb + (jj * 2 + u) * 4
                cin = "0" if ks == 0 else vr(vACC + 16 * u, 16)
                a.e(f"v_mfma_f32_32x32x16_bf16 {vr(vACC+16*u,16)}, {vr(b,4)}, {vr(vB+4*ks,4)}, {cin}")
        if k + 5 <= 15:
            c_ = k + 5
            if c_ >= 9: a.e(f"s_waitcnt vmcnt({4*(ndma-(c_-8))})")
            a_reads(c_)
    stamp(46)
    a.e("s_barrier")
    q, wa, tq, hi2 = 2, 3, 4, 5
    a.e(f"v_lshrrev_b32 v{hi2}, 5, v{vLANE}")
    a.e(f"v_and_b32 v{q}, 31, v{vLANE}")
    a.e(f"v_xor_b32 v{wa}, v{q}, v{hi2}")
    a.e(f"v_lshlrev_b32 v{wa}, 4, v{wa}")
    a.e(f"v_lshl_add_u32 v{wa}, v{hi2}, 9, v{wa}")
    a.e(f"s_lshl_b32 s{sT0}, s{sW}, 13")
    a.e(f"v_add_u32 v{wa}, s{sT0}, v{wa}")
    a.nop(5)
    for u in range(2):
        for gg in range(4):
            k = u * 8 + gg * 2
            a.e(f"v_xor_b32 v{tq}, {k*16}, v{wa}")
            a.e(f"ds_write_b128 v{tq}, {vr(vACC+16*u+4*gg,4)} offset:{k*512}")
    a.e(f"v_lshrrev_b32 v{q}, 4, v{vLANE}")
    a.e(f"s_lshl_b32 s{sT0}, s{sW}, 2")
    a.e(f"v_add_u32 v{q}, s{sT0}, v{q}")
    a.e(f"v_and_b32 v{tq}, 15, v{vLANE}")
    a.e(f"v_xor_b32 v{wa}, v{q}, v{tq}")
    a.e(f"v_lshlrev_b32 v{wa}, 4, v{wa}")
    a.e(f"v_lshl_add_u32 v{wa}, v{tq}, 9, v{wa}")
    a.e(f"v_lshlrev_b32 v{hi2}, 3, v{tq}")
    a.e(f"v_lshl_add_u32 v{hi2}, v{q}, 10, v{hi2}")
    a.e("s_waitcnt lgkmcnt(0)"); a.e("s_barrier")
    for s_ in range(8):
        a.e(f"ds_read_b128 {vr(vB+4*s_,4)}, v{wa} offset:{s_*8192}")
    for s_ in range(1, 8):
        a.e(f"s_waitcnt lgkmcnt({7-s_})")
        for i in range(4):
            a.e(f"v_add_f32 v{vB+i}, v{vB+i}, v{vB+4*s_+i}")
    a.e(f"v_cvt_pk_bf16_f32 v{vACC}, v{vB}, v{vB+1}")
    a.e(f"v_cvt_pk_bf16_f32 v{vACC+1}, v{vB+2}, v{vB+3}")
    a.e(f"buffer_store_dwordx2 {vr(vACC,2)}, v{hi2}, {sr(S_OUT)}, 0 offen{fout}")
    stamp(47)
    if ST:
        a.e("s_waitcnt vmcnt(0)")
        stamp(48)
        a.e(f"s_lshl_b32 s76, s2, 3"); a.e(f"s_add_u32 s76, s76, s{sW}"); a.e("s_lshl_b32 s76, s76, 8"); a.e(f"s_add_u32 s76, s76, {64<<20}")
        a.e(f"v_lshlrev_b32 v2, 2, v{vLANE}"); a.e("v_add_u32 v2, s76, v2")
        a.e(f"global_store_dword v2, v{vST}, s[18:19]")
        a.e(f"v_add_u32 v2, {1<<20}, v2")
        a.e(f"global_store_dword v2, v0, s[18:19]")
    a.label("L_end")
    a.e("s_endpgm")

    hdr = [f"; @launch grid=(256,1,1) block=(512,1,1) lds={LDS_BYTES}",
           '.amdgcn_target "amdgcn-amd-amdhsa--gfx950"', ".text"]
    txt = "\n".join(hdr) + "\n" + a.text()
    txt += f""".section .rodata,"a"
.p2align 6
.amdhsa_kernel {NAME}
  .amdhsa_next_free_vgpr 256
  .amdhsa_next_free_sgpr 96
  .amdhsa_accum_offset 256
  .amdhsa_group_segment_fixed_size 0
  .amdhsa_kernarg_size 64
  .amdhsa_user_sgpr_count 2
  .amdhsa_user_sgpr_kernarg_segment_ptr 1
  .amdhsa_system_sgpr_workgroup_id_x 1
.end_amdhsa_kernel
"""
    return txt

if __name__ == "__main__":
    out = sys.argv[1] if len(sys.argv) > 1 else "k.s"
    cfg = {}
    for kv in sys.argv[2:]:
        k, v = kv.split("=", 1)
        cfg[k] = int(v) if v.lstrip("-").isdigit() else v
    open(out, "w").write(gen(cfg))
```

```python
import sys, math, struct

NAME = "standalone__mha_block_cached__near_ridge_kernel"
C_SCALE = math.log2(math.e) / math.sqrt(128.0)
def f32bits(x): return struct.unpack("<I", struct.pack("<f", x))[0]

class Asm:
    def __init__(self):
        self.L = []; self.lds_seq = 0; self.uid = 0
    def e(self, s): self.L.append("    " + s)
    def label(self, s): self.L.append(s + ":")
    def newlabel(self, p="L"):
        self.uid += 1; return f"{p}_{self.uid}"
    def lds(self, s):
        self.e(s); self.lds_seq += 1; return self.lds_seq
    def wait_lds(self, tok):
        self.e(f"s_waitcnt lgkmcnt({min(self.lds_seq - tok, 15)})")
    def nop(self, n):
        while n > 0:
            k = min(n, 16); self.e(f"s_nop {k-1}"); n -= k
    def text(self): return "\n".join(self.L) + "\n"

def vr(b, n): return f"v[{b}:{b+n-1}]"
def sr(b): return f"s[{b}:{b+3}]"
MF = "v_mfma_f32_16x16x32_bf16"

SLOT = 32768
LDS_BYTES = SLOT * 5
KRING, VRING = 0, 49152
XQ = 4 * SLOT
MA, MB, MSTAT = 0, 65536, 32768
CS = [3 * SLOT, 4 * SLOT, 0, 2 * SLOT]
FLAGLDS = 32768 + 8192

S_K, S_V, S_WQ, S_X, S_O, S_WO, S_OUT, S_DBG, S_OL = 20, 24, 28, 32, 36, 40, 44, 48, 80
sW, sQG, sKH, sB, sH, sC, sNC, sTOFF, sTOFV, sJ = range(52, 62)
sT0, sT1, sT2, sT3 = 64, 65, 66, 67
sW2K, sB2, sQB, sNB, sROT = 68, 69, 70, 71, 73
sW4K, sF, sHR = 78, 79, 84
sW2KV = 85

vLANE = 1
vKOFF = 2
vVOFF = 4
vST = 7
vKA = 8
vM = 12
vL = 14
vVA = 16
vNM = 24
vMT = 26
vT2 = 28
vAL = 30
vQ = 32
vO = 64
vS = [128, 144]
vP = 160
vKF = 168
vVF = 200
vDUM = 232
vDO = 236
vTMP = 240
vQACC = 64
vFR = 96
vXLD, vWLD = 12, 14
vXRD = 24
vWA = 26
vACC = 8
vA = 40
vB = 128

def srd(a, s, lo, hi, off_sgpr, nbytes):
    a.e(f"s_add_u32 s{s}, s{lo}, s{off_sgpr}")
    a.e(f"s_addc_u32 s{s+1}, s{hi}, 0")
    a.e(f"s_mov_b32 s{s+2}, {nbytes:#x}")
    a.e(f"s_mov_b32 s{s+3}, 0x20000")

COST = {"v_exp_f32": 8, "v_rcp_f32": 8}
def cost(line):
    op = line.split()[0]
    if op.startswith("buffer_load"): return 16
    if op.startswith("s_"): return 2
    return COST.get(op, 4)

def gen(cfg):
    a = Asm()
    OB = cfg.get("ob", 1); HB = cfg.get("hb", 2); ST = cfg.get("stamp", 0)

    def stamp(idx):
        if not ST: return
        a.e("s_memrealtime s[74:75]"); a.e("s_waitcnt lgkmcnt(0)")
        if idx is not None: a.e(f"v_writelane_b32 v{vST}, s74, {idx}")
        else:
            a.e(f"s_add_u32 s76, s{sJ}, 8"); a.e(f"v_cmp_eq_u32 vcc, s76, v{vLANE}"); a.e(f"v_mov_b32 v{vTMP}, s74"); a.e("s_nop 1")
            a.e(f"v_cndmask_b32 v{vST}, v{vST}, v{vTMP}, vcc")
            a.e("s_memtime s[74:75]"); a.e("s_waitcnt lgkmcnt(0)"); a.e(f"v_mov_b32 v{vTMP}, s74"); a.e("s_nop 1")
            a.e(f"v_cndmask_b32 v0, v0, v{vTMP}, vcc")
    def cstamp(idx):
        if not ST: return
        a.e("s_memtime s[74:75]"); a.e("s_waitcnt lgkmcnt(0)"); a.e(f"v_writelane_b32 v{vST}, s74, {idx}")

    def item_lines(n3, with_k=True, with_v=True):
        L = []
        if with_k:
            L.append([f"s_add_u32 s{sT0}, s{sW2K}, {KRING + n3*16384}", f"s_mov_b32 m0, s{sT0}", "s_nop 0",
                      f"buffer_load_dwordx4 v{vKOFF}, {sr(S_K)}, s{sTOFF} offen nt lds"])
            L.append([f"buffer_load_dwordx4 v{vKOFF+1}, {sr(S_K)}, s{sTOFF} offen offset:1024 nt lds",
                      f"s_add_u32 s{sTOFF}, s{sTOFF}, 16384"])
        if with_v:
            L.append([f"s_add_u32 s{sT0}, s{sW2K}, {VRING + n3*16384}", f"s_mov_b32 m0, s{sT0}", "s_nop 0",
                      f"buffer_load_dwordx4 v{vVOFF}, {sr(S_V)}, s{sTOFV} offen nt lds"])
            L.append([f"buffer_load_dwordx4 v{vVOFF+1}, {sr(S_V)}, s{sTOFV} offen offset:1024 nt lds",
                      f"s_add_u32 s{sTOFV}, s{sTOFV}, 16384"])
        return L
    def emit_groups(G):
        for g in G:
            for l in g: a.e(l)
    def wo_chunk_lines(k, vdo):
        G = [[f"s_add_u32 s{sT0}, s{sW4K}, {CS[k % 4]}", f"s_mov_b32 m0, s{sT0}",
              f"s_lshl_b32 s{sT1}, s{sHR}, 17", f"s_add_u32 s{sT1}, s{sT1}, {k*32768}", f"s_and_b32 s{sT1}, s{sT1}, 0x7ffff",
              f"buffer_load_dwordx4 v{vdo}, {sr(S_WO)}, s{sT1} offen lds"]]
        for i in range(1, 4):
            G.append([f"buffer_load_dwordx4 v{vdo+i}, {sr(S_WO)}, s{sT1} offen offset:{i*1024} lds"])
        return G

    a.L += [f".globl {NAME}", ".p2align 8", f".type {NAME},@function"]; a.label(NAME)
    a.e("s_cmp_ge_u32 s2, 256"); a.e("s_cbranch_scc1 L_end")
    a.e("s_load_dwordx16 s[4:19], s[0:1], 0")
    a.e("v_lshrrev_b32 v2, 6, v0")
    a.e(f"v_and_b32 v{vLANE}, 63, v0")
    a.e(f"v_readfirstlane_b32 s{sW}, v2")
    a.e(f"s_and_b32 s{sT0}, s2, 7"); a.e(f"s_lshr_b32 s{sT1}, s2, 3")
    a.e(f"s_and_b32 s{sT2}, s{sT1}, {(1<<HB)-1}")
    a.e(f"s_lshr_b32 s{sT3}, s{sT1}, {HB}")
    a.e(f"s_and_b32 s{sH}, s{sT0}, {(1<<(5-HB))-1}"); a.e(f"s_lshl_b32 s{sH}, s{sH}, {HB}"); a.e(f"s_add_u32 s{sH}, s{sH}, s{sT2}")
    a.e(f"s_lshr_b32 s{sB}, s{sT0}, {5-HB}"); a.e(f"s_lshl_b32 s{sB}, s{sB}, {5-HB}"); a.e(f"s_add_u32 s{sB}, s{sB}, s{sT3}")
    RA, RB = {2: (1, 2), 3: (2, 1), 4: (4, 1), 5: (0, 1)}[HB]
    a.e(f"s_mul_i32 s{sROT}, s{sT3}, {RA}"); a.e(f"s_mul_i32 s{sT2}, s{sT2}, {RB}"); a.e(f"s_add_u32 s{sROT}, s{sROT}, s{sT2}")
    a.e(f"s_and_b32 s{sQB}, s{sT1}, 3")
    a.e(f"s_lshr_b32 s{sT2}, s{sT1}, 2")
    a.e(f"s_and_b32 s{sNB}, s{sT2}, {(1<<(3-OB))-1}")
    a.e(f"s_lshr_b32 s{sT2}, s{sT2}, {3-OB}")
    a.e(f"s_and_b32 s{sB2}, s{sT0}, {(1<<(3-OB))-1}"); a.e(f"s_lshl_b32 s{sB2}, s{sB2}, {OB}"); a.e(f"s_add_u32 s{sB2}, s{sB2}, s{sT2}")
    a.e(f"s_lshr_b32 s{sT3}, s{sT0}, {3-OB}"); a.e(f"s_lshl_b32 s{sT3}, s{sT3}, {3-OB}"); a.e(f"s_add_u32 s{sNB}, s{sNB}, s{sT3}")
    a.e(f"s_add_u32 s{sHR}, s{sQB}, s{sNB}"); a.e(f"s_and_b32 s{sHR}, s{sHR}, 3")
    a.e(f"s_and_b32 s{sQG}, s{sW}, 3"); a.e(f"s_lshr_b32 s{sKH}, s{sW}, 2")
    a.e(f"s_lshl_b32 s{sW2K}, s{sW}, 11"); a.e(f"s_lshl_b32 s{sW4K}, s{sW}, 12")
    a.e(f"s_mov_b32 s{sC}, {f32bits(C_SCALE):#x}"); a.e(f"s_mov_b32 s{sNC}, {f32bits(-C_SCALE):#x}")
    g, l15, l8, ch, r, c8, tA, tB = [vTMP + i for i in range(8)]
    a.e(f"v_lshrrev_b32 v{g}, 4, v{vLANE}")
    a.e(f"v_and_b32 v{l15}, 15, v{vLANE}")
    a.e(f"v_lshrrev_b32 v{l8}, 3, v{vLANE}")
    a.e(f"v_and_b32 v{ch}, 7, v{vLANE}")
    a.e(f"s_and_b32 s{sT0}, s{sW}, 1"); a.e(f"s_lshl_b32 s{sT0}, s{sT0}, 3")
    a.e(f"v_lshlrev_b32 v{tA}, 1, v{g}")
    a.e(f"v_or_b32 v{tA}, s{sT0}, v{tA}")
    a.e(f"v_xor_b32 v{tA}, v{tA}, v{l15}")
    a.e(f"v_lshlrev_b32 v{tA}, 4, v{tA}")
    a.e(f"v_lshl_add_u32 v{vWLD}, v{g}, 13, v{tA}")
    a.e(f"s_lshl_b32 s{sT0}, s{sW}, 16")
    a.e(f"v_add_u32 v{vWLD}, s{sT0}, v{vWLD}")
    a.e(f"v_add_u32 v{vWLD+1}, {32768-1024}, v{vWLD}")
    a.e(f"v_lshrrev_b32 v{tA}, 1, v{l8}")
    a.e(f"v_xor_b32 v{tA}, v{tA}, v{ch}")
    a.e(f"v_lshlrev_b32 v{tA}, 4, v{tA}")
    a.e(f"v_lshl_add_u32 v{vXLD}, v{l8}, 10, v{tA}")
    a.e(f"s_lshl_b32 s{sT0}, s{sW}, 14")
    a.e(f"v_add_u32 v{vXLD}, s{sT0}, v{vXLD}")
    a.e(f"v_xor_b32 v{vXLD+1}, 64, v{vXLD}")
    a.e(f"v_add_u32 v{vXLD+1}, {8192-1024}, v{vXLD+1}")
    a.e("s_waitcnt lgkmcnt(0)")
    if ST: a.e(f"v_mov_b32 v{vST}, 0")
    stamp(0)
    a.e(f"s_lshl_b32 s{sT1}, s{sH}, 8")
    srd(a, S_WQ, 10, 11, sT1, 0x400000 - 31 * 256)
    a.e(f"s_lshl_b32 s{sT1}, s{sB}, 17")
    srd(a, S_X, 4, 5, sT1, 0x20000)
    def S_lines(st):
        slot = 1 + st % 4
        return [[f"s_add_u32 s{sT2}, s{sROT}, {st}", f"s_and_b32 s{sT2}, s{sT2}, 7",
                 f"s_add_u32 s{sT3}, s{sW2K}, {slot*SLOT}", f"s_mov_b32 m0, s{sT3}",
                 f"s_lshl_b32 s{sT1}, s{sT2}, 19", f"s_lshl_b32 s{sT2}, s{sT2}, 7",
                 f"buffer_load_dwordx4 v{vXLD}, {sr(S_X)}, s{sT2} offen lds"],
                [f"buffer_load_dwordx4 v{vXLD+1}, {sr(S_X)}, s{sT2} offen offset:1024 lds"],
                [f"s_add_u32 s{sT3}, s{sT3}, 16384", f"s_mov_b32 m0, s{sT3}", "s_nop 0",
                 f"buffer_load_dwordx4 v{vWLD}, {sr(S_WQ)}, s{sT1} offen lds"],
                [f"buffer_load_dwordx4 v{vWLD+1}, {sr(S_WQ)}, s{sT1} offen offset:1024 lds"]]
    for st in range(2): emit_groups(S_lines(st))
    a.e(f"s_lshl_b32 s{sT0}, s{sW}, 3"); a.e(f"s_and_b32 s{sT0}, s{sT0}, 8")
    a.e(f"v_add_u32 v{tA}, s{sT0}, v{g}")
    a.e(f"v_xor_b32 v{tA}, v{tA}, v{l15}")
    a.e(f"v_lshlrev_b32 v{tA}, 4, v{tA}")
    a.e(f"v_lshl_add_u32 v{vKOFF}, v{g}, 8, v{tA}")
    a.e(f"v_add_u32 v{vKOFF}, s{sW2K}, v{vKOFF}")
    a.e(f"v_xor_b32 v{vKOFF+1}, 64, v{vKOFF}")
    a.e(f"v_lshlrev_b32 v{tA}, 1, v{g}")
    a.e(f"v_xor_b32 v{tB}, v{tA}, v{l15}")
    a.e(f"v_lshlrev_b32 v{tB}, 4, v{tB}")
    a.e(f"v_lshl_add_u32 v{vVOFF}, v{g}, 8, v{tB}")
    a.e(f"v_add_u32 v{vVOFF}, s{sW2K}, v{vVOFF}")
    a.e(f"v_xor_b32 v{vVOFF+1}, 128, v{vVOFF}")
    a.e(f"v_xor_b32 v{tB}, v{tA}, v{ch}")
    a.e(f"v_lshlrev_b32 v{tB}, 4, v{tB}")
    a.e(f"v_lshl_add_u32 v{vDO}, v{l8}, 10, v{tB}")
    for i in range(1, 4): a.e(f"v_add_u32 v{vDO+i}, {i*(8192-1024)}, v{vDO}")
    a.e(f"s_lshl_b32 s{sT0}, s{sB}, 5"); a.e(f"s_add_u32 s{sT0}, s{sT0}, s{sH}"); a.e(f"s_lshl_b32 s{sT1}, s{sT0}, 19")
    srd(a, S_K, 6, 7, sT1, 0x80000)
    srd(a, S_V, 8, 9, sT1, 0x80000)
    a.e(f"s_mov_b32 s{sTOFF}, 0"); a.e(f"s_mov_b32 s{sTOFV}, 0")
    a.e(f"s_lshl_b32 s{sT1}, s{sB}, 21"); a.e(f"s_lshl_b32 s{sT0}, s{sH}, 13"); a.e(f"s_add_u32 s{sT1}, s{sT1}, s{sT0}")
    srd(a, S_O, 18, 19, sT1, 3 * 262144 + 8192)
    a.e(f"s_lshl_b32 s{sT1}, s{sB2}, 21"); a.e(f"s_lshl_b32 s{sT0}, s{sQB}, 18"); a.e(f"s_add_u32 s{sT1}, s{sT1}, s{sT0}")
    a.e(f"s_lshl_b32 s{sT0}, s{sW}, 15"); a.e(f"s_add_u32 s{sT1}, s{sT1}, s{sT0}")
    srd(a, S_OL, 18, 19, sT1, 32768)
    a.e(f"s_lshl_b32 s{sT0}, s{sW}, 19"); a.e(f"s_lshl_b32 s{sT1}, s{sNB}, 7"); a.e(f"s_add_u32 s{sT0}, s{sT0}, s{sT1}")
    srd(a, S_WO, 12, 13, sT0, 511 * 1024 + 128)
    a.e(f"s_lshl_b32 s{sT0}, s{sB2}, 17"); a.e(f"s_lshl_b32 s{sT1}, s{sQB}, 15"); a.e(f"s_add_u32 s{sT0}, s{sT0}, s{sT1}")
    a.e(f"s_lshl_b32 s{sT1}, s{sNB}, 7"); a.e(f"s_add_u32 s{sT0}, s{sT0}, s{sT1}")
    srd(a, S_OUT, 14, 15, sT0, 31 * 1024 + 128)
    a.e(f"s_mov_b32 s{S_DBG}, s16"); a.e(f"s_mov_b32 s{S_DBG+1}, s17"); a.e(f"s_mov_b32 s{S_DBG+2}, 256"); a.e(f"s_mov_b32 s{S_DBG+3}, 0x20000")
    for st in range(2, 4): emit_groups(S_lines(st))
    T1EARLY = cfg.get("t1early", 1)
    emit_groups(item_lines(0, with_v=False))
    if T1EARLY: emit_groups(item_lines(1, with_v=False))
    a.e(f"buffer_load_dword v{vDUM}, v{vVOFF}, {sr(S_V)}, 0 offen nt")

    a.e(f"v_bfe_u32 v{r}, v{vLANE}, 2, 2")
    a.e(f"v_and_b32 v{c8}, 3, v{vLANE}")
    a.e(f"v_lshlrev_b32 v{c8}, 3, v{c8}")
    a.e(f"s_lshl_b32 s{sT1}, s{sKH}, 7")
    kr = ch
    a.e(f"v_and_b32 v{kr}, 1, v{g}")
    a.e(f"v_lshl_add_u32 v{kr}, v{kr}, 2, v{r}")
    a.e(f"v_lshl_add_u32 v{tA}, v{kr}, 5, v{c8}")
    a.e(f"v_xor_b32 v{tA}, s{sT1}, v{tA}")
    a.e(f"v_lshl_add_u32 v{tB}, v{g}, 3, v{r}")
    a.e(f"v_lshl_add_u32 v{tB}, v{tB}, 8, v{tA}")
    a.e(f"v_add_u32 v{tB}, 16384, v{tB}")
    for tt in range(4): a.e(f"v_xor_b32 v{vWA+tt}, {tt<<5}, v{tB}")
    a.e(f"v_lshl_add_u32 v{tB}, v{g}, 2, v{r}")
    a.e(f"v_lshl_add_u32 v{tB}, v{tB}, 8, v{tA}")
    a.e(f"s_lshl_b32 s{sT0}, s{sKH}, 13"); a.e(f"s_add_u32 s{sT2}, s{sT0}, {VRING}")
    a.e(f"v_add_u32 v{tB}, s{sT2}, v{tB}")
    for aa in range(8): a.e(f"v_xor_b32 v{vVA+aa}, {aa<<5}, v{tB}")
    a.e(f"v_lshrrev_b32 v{tA}, 1, v{l15}")
    a.e(f"v_xor_b32 v{tA}, v{tA}, v{g}")
    a.e(f"v_lshlrev_b32 v{tA}, 4, v{tA}")
    a.e(f"v_lshl_add_u32 v{tA}, v{l15}, 7, v{tA}")
    a.e(f"s_lshl_b32 s{sT2}, s{sQG}, 12")
    a.e(f"v_add_u32 v{vXRD}, s{sT2}, v{tA}")
    a.e(f"v_xor_b32 v{vXRD+1}, 64, v{vXRD}")
    kq = l8
    a.e(f"v_xor_b32 v{kq}, v{g}, v{l15}")
    a.e(f"v_lshlrev_b32 v{kq}, 4, v{kq}")
    a.e(f"v_lshl_add_u32 v{kq}, v{l15}, 8, v{kq}")
    a.e(f"v_add_u32 v{tA}, s{sT0}, v{kq}")
    for ds in range(4): a.e(f"v_xor_b32 v{vKA+ds}, {ds<<6}, v{tA}")
    stamp(1)

    order = ["S0", "S1", "S2", "S3", "T0", "S4", "S5", "S6", "S7", "T1", "T2", "N0"]
    cnt = {n: 4 for n in order}
    cnt["N0"] = 0
    cnt["T0"] = (4 if T1EARLY else 2) + 1
    cnt["T1"] = 0 if T1EARLY else 2
    cur_hi = [0]
    def frag_regs(st, ks):
        b = vFR + (st % 2) * 48 + ks * 24
        return [b, b + 4], [b + 8 + 4 * tt for tt in range(4)]
    def read_ops(st):
        base = ((1 + st % 4) * SLOT) & 0xffff
        ops = []
        for ks in range(2):
            xs, ws_ = frag_regs(st, ks)
            for qt in range(2):
                ops.append(f"ds_read_b128 {vr(xs[qt],4)}, v{vXRD+ks} offset:{base+qt*2048}")
            for tt in range(4):
                ops.append(f"ds_read_b64_tr_b16 {vr(ws_[tt],2)}, v{vWA+tt} offset:{base+ks*8192}")
                ops.append(f"ds_read_b64_tr_b16 {vr(ws_[tt]+2,2)}, v{vWA+tt} offset:{base+ks*8192+1024}")
        return ops
    def set_hi(st):
        hi_add = ((1 + st % 4) * SLOT) & ~0xffff
        if hi_add != cur_hi[0]:
            a.e(f"s_mov_b32 s{sT0}, {hi_add - cur_hi[0]}")
            for rr in [vXRD, vXRD + 1] + [vWA + i for i in range(4)]:
                a.e(f"v_add_u32 v{rr}, s{sT0}, v{rr}")
            cur_hi[0] = hi_add
    def sync_step(st):
        issued = 5 + max(st - 1, 0)
        idx = order.index(f"S{st}")
        after = sum(cnt[n] for n in order[idx + 1:issued])
        a.e(f"s_waitcnt vmcnt({after}) lgkmcnt(0)")
        a.e("s_barrier")
        if st == 0: stamp(2); cstamp(52)
        if st == 4: stamp(3)
    def next_groups(st):
        n = order[4 + st]
        if n[0] == "S": return S_lines(int(n[1]))
        if n == "T1" and not T1EARLY: return item_lines(1, with_v=False)
        if n == "T2": return item_lines(2)
        return []
    sync_step(0)
    ops = read_ops(0)
    for o in ops[:15]: a.e(o)
    a.e("s_waitcnt lgkmcnt(8)")
    for o in ops[15:]: a.e(o)
    for st in range(8):
        ops = []; dma = []
        if st < 7:
            set_hi(st + 1)
            sync_step(st + 1)
            ops = read_ops(st + 1)
            dma = next_groups(st + 1)
        else:
            a.e("s_waitcnt lgkmcnt(0)")
            a.e("s_barrier")
        m = 0
        for ks in range(2):
            xs, ws_ = frag_regs(st, ks)
            for tt in range(4):
                for qt in range(2):
                    acc = vQACC + (tt * 2 + qt) * 4
                    cin = "0" if (st == 0 and ks == 0) else vr(acc, 4)
                    a.e(f"{MF} {vr(acc,4)}, {vr(ws_[tt],4)}, {vr(xs[qt],4)}, {cin}")
                    if ops and m >= 6: a.e("s_waitcnt lgkmcnt(10)")
                    nrd = 2 if m < 8 else 1
                    for o in ops[:nrd]: a.e(o)
                    ops = ops[nrd:]
                    if dma and m >= 2 and m % 2 == 0:
                        for l in dma.pop(0): a.e(l)
                    if st == 7 and m < 8:
                        for i in range(4): a.e(f"v_mov_b32 v{vO+32+4*m+i}, 0")
                    m += 1
        assert not ops and not dma, (len(ops), len(dma))
    stamp(4); cstamp(53)
    qw = tA
    a.e(f"v_lshrrev_b32 v{qw}, 1, v{g}")
    a.e(f"v_xor_b32 v{qw}, v{qw}, v{l15}")
    a.e(f"v_lshlrev_b32 v{qw}, 4, v{qw}")
    a.e(f"v_lshl_add_u32 v{qw}, v{l15}, 8, v{qw}")
    a.e(f"v_and_b32 v{tB}, 1, v{g}")
    a.e(f"v_lshl_add_u32 v{qw}, v{tB}, 3, v{qw}")
    a.e(f"s_lshl_b32 s{sT0}, s{sQG}, 13"); a.e(f"s_add_u32 s{sT0}, s{sT0}, {XQ}")
    a.e(f"s_lshl_b32 s{sT1}, s{sKH}, 7")
    a.e(f"v_xor_b32 v{qw}, s{sT1}, v{qw}")
    a.e(f"v_add_u32 v{qw}, s{sT0}, v{qw}")
    a.e(f"v_add_u32 v{kq}, s{sT0}, v{kq}")
    for tt in range(4):
        a.e(f"v_xor_b32 v{tB}, {tt<<5}, v{qw}")
        for qt in range(2):
            acc = vQACC + (tt * 2 + qt) * 4
            d = vQ + (tt * 2 + qt) * 2
            a.e(f"v_cvt_pk_bf16_f32 v{d}, v{acc}, v{acc+1}")
            a.e(f"v_cvt_pk_bf16_f32 v{d+1}, v{acc+2}, v{acc+3}")
            a.e(f"ds_write_b64 v{tB}, {vr(d,2)} offset:{qt*4096}")
    for i in range(2):
        a.e(f"v_mov_b32 v{vM+i}, 0xff800000"); a.e(f"v_mov_b32 v{vNM+i}, 0x7f800000"); a.e(f"v_mov_b32 v{vL+i}, 0")
    for i in range(32): a.e(f"v_mov_b32 v{vO+i}, 0")
    a.e(f"s_mov_b32 s{sJ}, 0")
    for ds in range(1, 4): a.e(f"v_xor_b32 v{vTMP+8+ds}, {ds<<6}, v{kq}")
    a.e(f"s_waitcnt vmcnt({cnt['T1'] + 4}) lgkmcnt(0)")
    a.e("s_barrier")
    for qt in range(2):
        for ds in range(4):
            ad = kq if ds == 0 else vTMP + 8 + ds
            a.e(f"ds_read_b128 {vr(vQ+(qt*4+ds)*4,4)}, v{ad} offset:{qt*4096}")
    a.e("s_waitcnt lgkmcnt(4)")
    for kt in range(2):
        for ds in range(4):
            a.e(f"ds_read_b128 {vr(vKF+(kt*4+ds)*4,4)}, v{vKA+ds} offset:{KRING + kt*4096}")
    stamp(6); cstamp(50)

    def iteration(i6, do_qk, do_pv, do_kr, wait, issue, tag, extra=None):
        par = i6 % 2
        slot = ((i6 + 1) % 3) * 16384
        Sn, Sp = vS[par], vS[1 - par]
        a.lds_seq = 0
        a.e(f"s_waitcnt vmcnt({wait}) lgkmcnt(0)")
        a.e("s_barrier")
        if ST >= 2: stamp(None)
        if ST == 1 and tag in ("l4", "p32"): cstamp(54 if tag == "l4" else 55)
        G = list(issue) if issue else []
        els = [(kt * 2 + qt) * 4 + rr for qt in range(2) for kt in range(2) for rr in range(4)]
        F1 = []
        if do_pv:
            fm = lambda k_: f"v_fma_f32 v{Sp+els[k_]}, v{Sp+els[k_]}, s{sC}, v{vNM + k_ // 8}"
            F1.append(fm(0))
            for k_ in range(16):
                if k_ + 1 < 16: F1.append(fm(k_ + 1))
                F1.append(f"v_exp_f32 v{Sp+els[k_]}, v{Sp+els[k_]}")
                if k_ >= 2 and k_ % 2 == 0:
                    p = k_ // 2 - 1
                    F1.append(f"v_cvt_pk_bf16_f32 v{vP+p}, v{Sp+els[2*p]}, v{Sp+els[2*p+1]}")
            F1.append(f"v_add_f32 v{vT2}, v{Sp+els[0]}, v{Sp+els[1]}")
            F1.append(f"v_cvt_pk_bf16_f32 v{vP+7}, v{Sp+els[14]}, v{Sp+els[15]}")
        vtok = {}
        def vread(h):
            aa, sec = h // 2, h % 2
            tk = a.lds(f"ds_read_b64_tr_b16 {vr(vVF+4*aa+2*sec,2)}, v{vVA+aa} offset:{slot+sec*4096}")
            if sec: vtok[aa] = tk
        def drain(F, budget):
            used = 0
            while F and used < budget:
                l = F.pop(0); a.e(l); used += cost(l)
        if do_qk:
            m = 0
            for kt in range(2):
                for qt in range(2):
                    acc = Sn + (kt * 2 + qt) * 4
                    for ds in range(4):
                        cin = "0" if ds == 0 else vr(acc, 4)
                        a.e(f"{MF} {vr(acc,4)}, {vr(vKF+(kt*4+ds)*4,4)}, {vr(vQ+(qt*4+ds)*4,4)}, {cin}")
                        if G and m % 2 == 0:
                            for l in G.pop(0): a.e(l)
                        if do_pv:
                            if m == 15: a.e("s_waitcnt lgkmcnt(14)")
                            vread(m)
                            drain(F1, cfg.get("gap1", 12))
                        m += 1
        else:
            for h in range(15): vread(h)
            emit_groups(G); G = []
            drain(F1, 64)
            a.e("s_waitcnt lgkmcnt(14)")
            vread(15)
        emit_groups(G)
        if extra: extra()
        drain(F1, 10000)
        F2 = []
        if do_pv:
            F2.append(f"v_add_f32 v{vT2+1}, v{Sp+els[8]}, v{Sp+els[9]}")
            for k_ in range(2, 8, 2):
                for qt in range(2):
                    F2.append(f"v_add_f32 v{vL+qt}, v{vL+qt}, v{Sp+els[8*qt+k_]}")
                    F2.append(f"v_add_f32 v{vT2+qt}, v{vT2+qt}, v{Sp+els[8*qt+k_+1]}")
            for qt in range(2): F2.append(f"v_add_f32 v{vL+qt}, v{vL+qt}, v{vT2+qt}")
        F3 = []
        if do_qk:
            for qt in range(2):
                e_ = [Sn + els[8 * qt + k_] for k_ in range(8)]
                F3.append(f"v_max3_f32 v{vMT+qt}, v{e_[0]}, v{e_[1]}, v{e_[2]}")
                F3.append(f"v_max3_f32 v{vMT+qt}, v{e_[3]}, v{e_[4]}, v{vMT+qt}")
                F3.append(f"v_max3_f32 v{vMT+qt}, v{e_[5]}, v{e_[6]}, v{vMT+qt}")
                F3.append(f"v_max_f32 v{vMT+qt}, v{e_[7]}, v{vMT+qt}")
                F3.append(f"v_fma_f32 v{vAL+qt}, v{vMT+qt}, s{sC}, v{vNM+qt}")
            F3.append(f"v_max_f32 v{vAL}, v{vAL}, v{vAL+1}")
            F3.append(f"v_cmp_lt_f32 vcc, 0x41000000, v{vAL}")
        def kread(x):
            kt, ds = x // 4, x % 4
            a.lds(f"ds_read_b128 {vr(vKF+x*4,4)}, v{vKA+ds} offset:{KRING+slot+kt*4096}")
        if do_pv:
            drain(F2, 8)
            m = 0
            for aa in range(8):
                a.wait_lds(vtok[aa])
                for qt in range(2):
                    acc = vO + (aa * 2 + qt) * 4
                    a.e(f"{MF} {vr(acc,4)}, {vr(vVF+4*aa,4)}, {vr(vP+4*qt,4)}, {vr(acc,4)}")
                    if do_kr and 2 <= m < 10: kread(m - 2)
                    if m < 15:
                        if F2: drain(F2, cfg.get("gap2", 8))
                        elif m >= 4: drain(F3, cfg.get("gap2", 8))
                    m += 1
            drain(F2, 10000)
        else:
            if do_kr:
                for x in range(8): kread(x)
            a.nop(4)
        drain(F3, 10000)
        a.e(f"s_add_u32 s{sJ}, s{sJ}, 1")
        if do_qk:
            a.e(f"s_cbranch_vccnz L_resc_{tag}")
            a.label(f"L_back_{tag}")
    def xgroup(op, reg, tmp):
        a.e(f"v_mov_b32 v{tmp}, v{reg}")
        a.nop(2)
        a.e(f"v_permlane32_swap_b32 v{reg}, v{tmp}")
        a.e(f"{op} v{reg}, v{reg}, v{tmp}")
        a.e(f"v_mov_b32 v{tmp}, v{reg}")
        a.nop(2)
        a.e(f"v_permlane16_swap_b32 v{reg}, v{tmp}")
        a.e(f"{op} v{reg}, v{reg}, v{tmp}")
    def rescale_code():
        a.label("L_resc")
        for qt in range(2):
            xgroup("v_max_f32", vMT + qt, vT2)
            a.e(f"v_max_f32 v{vMT+qt}, v{vMT+qt}, v{vM+qt}")
            a.e(f"v_sub_f32 v{vAL+qt}, v{vM+qt}, v{vMT+qt}")
            a.e(f"v_mul_f32 v{vAL+qt}, s{sC}, v{vAL+qt}")
            a.e(f"v_exp_f32 v{vAL+qt}, v{vAL+qt}")
            a.e(f"v_mov_b32 v{vM+qt}, v{vMT+qt}")
            a.e(f"v_mul_f32 v{vNM+qt}, s{sNC}, v{vMT+qt}")
        for qt in range(2): a.e(f"v_mul_f32 v{vL+qt}, v{vL+qt}, v{vAL+qt}")
        for aa in range(8):
            for qt in range(2):
                for i in range(4):
                    a.e(f"v_mul_f32 v{vO+(aa*2+qt)*4+i}, v{vO+(aa*2+qt)*4+i}, v{vAL+qt}")
        a.e("s_setpc_b64 s[88:89]")
    def rescale_stub(tag):
        a.label(f"L_resc_{tag}")
        a.e("s_getpc_b64 s[88:89]")
        a.e(f"s_add_u32 s88, s88, L_back_{tag}-L_resc_{tag}-4")
        a.e("s_addc_u32 s89, s89, -1")
        a.e("s_branch L_resc")
    def touches():
        ta = vTMP + 4
        a.e(f"s_lshl_b32 s{sT0}, s{sB}, 21"); a.e(f"s_add_u32 s{sT0}, s{sT0}, {(1<<20)+65536}")
        a.e(f"v_mov_b32 v{ta}, s{sT0}")
        a.e(f"s_lshl_b32 s{sT0}, s{sB2}, 21"); a.e(f"s_add_u32 s{sT0}, s{sT0}, {(1<<20)+65536}")
        a.e(f"v_mov_b32 v{ta+1}, s{sT0}")
        a.e(f"v_mov_b32 v{ta+2}, 0")
        a.e(f"global_load_dword v{vDUM}, v{ta}, s[18:19]")
        a.e(f"global_load_dword v{vDUM}, v{ta+1}, s[18:19]")
        a.e(f"buffer_load_dword v{vDUM}, v{ta+2}, {sr(S_OUT)}, 0 offen")
        a.e(f"buffer_load_dword v{vDUM}, v{ta+2}, {sr(S_DBG)}, 0 offen sc1")
    tags = ["i0"]
    iteration(0, True, False, True, 4, item_lines(0), "i0")
    a.L.append(".p2align 6")
    a.label("L_loop")
    for u in range(6):
        i6 = 1 + u
        iteration(i6, True, True, True, 4, item_lines(i6 % 3), f"l{u}")
        tags.append(f"l{u}")
    a.e(f"s_cmp_lt_u32 s{sJ}, 31"); a.e("s_cbranch_scc1 L_loop")
    iteration(31, True, True, False, 4, None, "p31",
              extra=lambda: (emit_groups(wo_chunk_lines(0, vDO)), emit_groups(wo_chunk_lines(1, vDO)), touches()))
    tags.append("p31")
    iteration(32, False, True, False, 12, None, "p32")
    a.e("s_branch L_loopdone")
    for tag in tags: rescale_stub(tag)
    rescale_code()
    a.label("L_loopdone")
    stamp(41)

    ea = vTMP; mp = vTMP + 4; mx = vTMP + 8
    a.e(f"v_lshlrev_b32 v{ea}, 4, v{vLANE}")
    a.e(f"s_lshl_b32 s{sT0}, s{sQG}, 13")
    a.e(f"v_add_u32 v{ea+1}, s{sT0}, v{ea}")
    a.e(f"s_cmp_eq_u32 s{sKH}, 0")
    a.e(f"s_cselect_b32 s{sT0}, {MA}, {MB}")
    a.e(f"s_cselect_b32 s{sT1}, {MB}, {MA}")
    a.e(f"v_add_u32 v{ea+2}, s{sT1}, v{ea+1}")
    a.e(f"v_add_u32 v{ea+1}, s{sT0}, v{ea+1}")
    a.e(f"s_lshl_b32 s{sT0}, s{sW}, 10"); a.e(f"s_add_u32 s{sT0}, s{sT0}, {MSTAT}")
    a.e(f"v_add_u32 v{ea+3}, s{sT0}, v{ea}")
    for i in range(8):
        a.e(f"ds_write_b128 v{ea+1}, {vr(vO+32+4*i,4)} offset:{i*1024}")
    for qt in range(2): xgroup("v_add_f32", vL + qt, vT2)
    a.e(f"ds_write_b128 v{ea+3}, {vr(vM,4)}")
    a.e(f"v_xor_b32 v{ea+3}, 4096, v{ea+3}")
    a.e("s_waitcnt lgkmcnt(0)"); a.e("s_barrier")
    a.e(f"ds_read_b128 {vr(mp,4)}, v{ea+3}")
    for i in range(8):
        a.e(f"ds_read_b128 {vr(vKF+4*i,4)}, v{ea+2} offset:{i*1024}")
    a.e(f"s_lshl_b32 s{sT0}, s{sQG}, 18"); a.e(f"s_lshl_b32 s{sT1}, s{sKH}, 12"); a.e(f"s_add_u32 s{sT2}, s{sT0}, s{sT1}")
    a.e("s_waitcnt lgkmcnt(8)")
    fs, fp = vT2, vAL
    for qt in range(2):
        a.e(f"v_max_f32 v{mx+qt}, v{vM+qt}, v{mp+qt}")
        a.e(f"v_sub_f32 v{fs+qt}, v{vM+qt}, v{mx+qt}")
        a.e(f"v_sub_f32 v{fp+qt}, v{mp+qt}, v{mx+qt}")
        a.e(f"v_mul_f32 v{fs+qt}, s{sC}, v{fs+qt}")
        a.e(f"v_mul_f32 v{fp+qt}, s{sC}, v{fp+qt}")
        a.e(f"v_exp_f32 v{fs+qt}, v{fs+qt}")
        a.e(f"v_exp_f32 v{fp+qt}, v{fp+qt}")
    for qt in range(2):
        a.e(f"v_mul_f32 v{mx+qt}, v{vL+qt}, v{fs+qt}")
        a.e(f"v_fma_f32 v{mx+qt}, v{mp+2+qt}, v{fp+qt}, v{mx+qt}")
    for qt in range(2): a.e(f"v_rcp_f32 v{mx+qt}, v{mx+qt}")
    a.nop(1)
    for qt in range(2):
        a.e(f"v_mul_f32 v{fs+qt}, v{fs+qt}, v{mx+qt}")
        a.e(f"v_mul_f32 v{fp+qt}, v{fp+qt}, v{mx+qt}")
    for aa in range(4):
        for qt in range(2):
            for i in range(4):
                a.e(f"v_mul_f32 v{vO+(aa*2+qt)*4+i}, v{vO+(aa*2+qt)*4+i}, v{fs+qt}")
    for mm in range(2):
        a.e(f"s_waitcnt lgkmcnt({4-4*mm})")
        for x in range(16 * mm, 16 * mm + 16):
            qt = (x // 4) % 2
            a.e(f"v_fma_f32 v{vO+x}, v{vKF+x}, v{fp+qt}, v{vO+x}")
        for qt in range(2):
            f = 2 * mm + qt
            for half in range(2):
                src = vO + ((2 * mm + half) * 2 + qt) * 4
                a.e(f"v_cvt_pk_bf16_f32 v{vVF+4*f+2*half}, v{src}, v{src+1}")
                a.e(f"v_cvt_pk_bf16_f32 v{vVF+4*f+2*half+1}, v{src+2}, v{src+3}")
            a.e(f"buffer_store_dwordx4 {vr(vVF+4*f,4)}, v{ea}, {sr(S_O)}, s{sT2} offen offset:{f*1024} sc1")
    stamp(42)
    tDO, tAA, tAT, tBO, tF = 2, 120, 124, 6, 8
    for i in range(4): a.e(f"v_mov_b32 v{tDO+i}, v{vDO+i}")
    a.e(f"v_lshrrev_b32 v{tAT}, 4, v{vLANE}")
    a.e(f"v_bfe_u32 v{tAT+1}, v{vLANE}, 2, 2")
    a.e(f"v_lshl_add_u32 v{tAT+2}, v{tAT}, 2, v{tAT+1}")
    a.e(f"v_bfe_u32 v{tAT+3}, v{tAT+2}, 1, 2")
    a.e(f"v_and_b32 v{tAT}, 3, v{vLANE}")
    a.e(f"v_lshlrev_b32 v{tAT}, 3, v{tAT}")
    a.e(f"v_lshl_add_u32 v{tAT}, v{tAT+3}, 5, v{tAT}")
    a.e(f"v_lshl_add_u32 v{tAT}, v{tAT+2}, 7, v{tAT}")
    a.e(f"v_add_u32 v{tAT}, s{sW4K}, v{tAT}")
    for nt in range(4): a.e(f"v_xor_b32 v{tAA+nt}, {nt<<5}, v{tAT}")
    cur = [0]
    def a_reads(k):
        so = CS[k % 4]
        win, base = so & ~0xffff, so & 0xffff
        if win != cur[0]:
            a.e(f"s_mov_b32 s{sT0}, {win - cur[0]}")
            for nt in range(4): a.e(f"v_add_u32 v{tAA+nt}, s{sT0}, v{tAA+nt}")
            cur[0] = win
        fb = vA + (k % 5) * 16
        for nt in range(4):
            a.e(f"ds_read_b64_tr_b16 {vr(fb+4*nt,2)}, v{tAA+nt} offset:{base}")
            a.e(f"ds_read_b64_tr_b16 {vr(fb+4*nt+2,2)}, v{tAA+nt} offset:{base+2048}")
    a.e("s_waitcnt vmcnt(8)")
    a_reads(0)
    a.e("s_waitcnt lgkmcnt(4)")
    a_reads(1)
    vFD, vFC, vFW, vFG, vFR_ = tF, tF + 1, tF + 2, tF + 3, tF + 4
    a.e(f"v_lshlrev_b32 v{tBO}, 4, v{vLANE}")
    a.e(f"v_and_b32 v{vFG}, 7, v{vLANE}")
    a.e(f"v_lshlrev_b32 v{vFG}, 2, v{vFG}")
    a.e(f"v_add_u32 v{vFW}, {FLAGLDS}, v{vFG}")
    a.e(f"s_lshl_b32 s{sT0}, s{sB2}, 5")
    a.e(f"v_add_u32 v{vFG}, s{sT0}, v{vFG}")
    a.e(f"s_lshl_b32 s{sT0}, s{sW}, 2"); a.e(f"s_add_u32 s{sT0}, s{sT0}, {FLAGLDS}")
    a.e(f"v_mov_b32 v{vFR_}, s{sT0}")
    a.e(f"v_mov_b32 v{vFD}, 0")
    a.e(f"v_mov_b32 v{vFC}, 0x01010101")
    a.e(f"ds_write_b32 v{vFW}, v{vFD}")
    a.e("s_waitcnt lgkmcnt(0)")
    emit_groups(wo_chunk_lines(4, tDO)); emit_groups(wo_chunk_lines(5, tDO))
    a.e("s_waitcnt vmcnt(8)")
    a.e("s_barrier")
    a.e(f"s_cmp_lg_u32 s{sW}, 0"); a.e("s_cbranch_scc1 L_noflag")
    a.e(f"s_lshl_b32 s{sT0}, s{sB}, 5"); a.e(f"s_add_u32 s{sT0}, s{sT0}, s{sH}")
    a.e(f"v_mov_b32 v{vFD}, 1"); a.e(f"v_mov_b32 v{tF+5}, s{sT0}")
    a.e("s_mov_b64 exec, 1")
    a.e(f"buffer_store_byte v{vFD}, v{tF+5}, {sr(S_DBG)}, 0 offen sc1")
    a.e("s_mov_b64 exec, -1")
    a.label("L_noflag")
    stamp(43)
    emit_groups(wo_chunk_lines(2, tDO)); emit_groups(wo_chunk_lines(3, tDO))
    for k, w_, nxt in ((4, 12, 8), (2, 8, 6), (3, 8, 7)):
        a.e(f"s_waitcnt vmcnt({w_})")
        a_reads(k)
        a.e("s_waitcnt lgkmcnt(0)")
        emit_groups(wo_chunk_lines(nxt, tDO))
    stamp(44)
    def poll(first=False):
        lo_ = a.newlabel("L_pl"); lj = a.newlabel("L_pj")
        a.e(f"s_cmp_lg_u32 s{sW}, 0"); a.e(f"s_cbranch_scc1 {lo_}")
        if not first: a.e(f"s_sleep {cfg.get('psleep', 4)}")
        a.e(f"buffer_load_dword v{vFD}, v{vFG}, {sr(S_DBG)}, 0 offen sc1")
        a.e("s_waitcnt vmcnt(0)")
        a.e(f"ds_write_b32 v{vFW}, v{vFD}")
        a.e(f"v_cmp_eq_u32 s[86:87], v{vFD}, v{vFC}")
        a.e(f"s_branch {lj}")
        a.label(lo_)
        if not first: a.e("s_sleep 1")
        a.e(f"ds_read_b32 v{vFD}, v{vFR_}")
        a.e("s_waitcnt lgkmcnt(0)")
        a.label(lj)
        a.e(f"v_alignbyte_b32 v{vFD}, v{vFD}, v{vFD}, s{sHR}")
        a.e("s_nop 0")
        a.e(f"v_readfirstlane_b32 s{sF}, v{vFD}")
        a.e("s_nop 1")
    a.e("s_mov_b64 s[86:87], -1")
    poll(True)
    for hh in range(4):
        a.label(f"L_p{hh}")
        a.e(f"s_and_b32 s{sT0}, s{sF}, {0xff << (8*hh):#x}")
        a.e(f"s_cbranch_scc1 L_go{hh}")
        poll()
        a.e(f"s_branch L_p{hh}")
        a.label(f"L_go{hh}")
        a.e(f"s_add_u32 s{sT1}, s{sHR}, {hh}"); a.e(f"s_and_b32 s{sT1}, s{sT1}, 3"); a.e(f"s_lshl_b32 s{sT1}, s{sT1}, 13")
        a.e(f"s_add_u32 s{sT2}, s{sT1}, 4096")
        for i in range(8):
            ks = hh * 8 + i
            a.e(f"buffer_load_dwordx4 {vr(vB+4*ks,4)}, v{tBO}, {sr(S_OL)}, s{sT1 if i < 4 else sT2} offen offset:{(i%4)*1024} sc1")
    a.label("L_pall")
    a.e("s_cmp_eq_u64 s[86:87], -1"); a.e("s_cbranch_scc1 L_palldone")
    poll()
    a.e("s_branch L_pall")
    a.label("L_palldone")
    a.e("s_waitcnt lgkmcnt(0)")
    stamp(45)
    ndma = 0
    for k in range(16):
        if k >= 1 and k + 4 <= 15: a.e("s_waitcnt lgkmcnt(0)")
        if k >= 1 and k + 8 <= 15:
            emit_groups(wo_chunk_lines(k + 8, tDO)); ndma += 1
        a.e(f"s_waitcnt vmcnt({min(63, 31 - (2*k+1) + 4*ndma)})")
        fb = vA + (k % 5) * 16
        for nt in range(4):
            for qt in range(2):
                acc = vACC + (nt * 2 + qt) * 4
                cin = "0" if k == 0 else vr(acc, 4)
                a.e(f"{MF} {vr(acc,4)}, {vr(fb+4*nt,4)}, {vr(vB+4*(2*k+qt),4)}, {cin}")
        if k + 5 <= 15:
            c_ = k + 5
            if c_ >= 9: a.e(f"s_waitcnt vmcnt({4*(ndma-(c_-8))})")
            a_reads(c_)
    stamp(46)
    a.e("s_barrier")
    q, wa, tq, gg = 2, 3, 4, 5
    a.e(f"v_lshrrev_b32 v{gg}, 4, v{vLANE}")
    a.e(f"v_and_b32 v{q}, 15, v{vLANE}")
    a.e(f"v_xor_b32 v{wa}, v{q}, v{gg}")
    a.e(f"v_lshlrev_b32 v{wa}, 4, v{wa}")
    a.e(f"v_lshl_add_u32 v{wa}, v{gg}, 9, v{wa}")
    a.e(f"s_lshl_b32 s{sT0}, s{sW}, 13")
    a.e(f"v_add_u32 v{wa}, s{sT0}, v{wa}")
    a.nop(2)
    for nt in range(4):
        a.e(f"v_xor_b32 v{tq}, {nt*64}, v{wa}")
        for qt in range(2):
            a.e(f"ds_write_b128 v{tq}, {vr(vACC+(nt*2+qt)*4,4)} offset:{nt*2048+qt*256}")
    a.e(f"s_lshl_b32 s{sT0}, s{sW}, 2")
    a.e(f"v_add_u32 v{gg}, s{sT0}, v{gg}")
    a.e(f"v_xor_b32 v{wa}, v{gg}, v{q}")
    a.e(f"v_lshlrev_b32 v{wa}, 4, v{wa}")
    a.e(f"v_lshl_add_u32 v{wa}, v{q}, 9, v{wa}")
    a.e(f"v_lshlrev_b32 v{tq}, 3, v{q}")
    a.e(f"v_lshl_add_u32 v{tq}, v{gg}, 10, v{tq}")
    a.e("s_waitcnt lgkmcnt(0)"); a.e("s_barrier")
    for s_ in range(8):
        a.e(f"ds_read_b128 {vr(vB+4*s_,4)}, v{wa} offset:{s_*8192}")
    for s_ in range(1, 8):
        a.e(f"s_waitcnt lgkmcnt({7-s_})")
        for i in range(4):
            a.e(f"v_add_f32 v{vB+i}, v{vB+i}, v{vB+4*s_+i}")
    a.e(f"v_cvt_pk_bf16_f32 v{vACC}, v{vB}, v{vB+1}")
    a.e(f"v_cvt_pk_bf16_f32 v{vACC+1}, v{vB+2}, v{vB+3}")
    a.e(f"buffer_store_dwordx2 {vr(vACC,2)}, v{tq}, {sr(S_OUT)}, 0 offen")
    stamp(47)
    if ST:
        a.e("s_waitcnt vmcnt(0)")
        stamp(48)
        a.e(f"s_lshl_b32 s76, s2, 3"); a.e(f"s_add_u32 s76, s76, s{sW}"); a.e("s_lshl_b32 s76, s76, 8"); a.e(f"s_add_u32 s76, s76, {64<<20}")
        a.e(f"v_lshlrev_b32 v2, 2, v{vLANE}"); a.e("v_add_u32 v2, s76, v2")
        a.e(f"global_store_dword v2, v{vST}, s[18:19]")
        a.e(f"v_add_u32 v2, {1<<20}, v2")
        a.e(f"global_store_dword v2, v0, s[18:19]")
    a.label("L_end")
    a.e("s_endpgm")

    hdr = [f"; @launch grid=(256,1,1) block=(512,1,1) lds={LDS_BYTES}",
           '.amdgcn_target "amdgcn-amd-amdhsa--gfx950"', ".text"]
    txt = "\n".join(hdr) + "\n" + a.text()
    txt += f""".section .rodata,"a"
.p2align 6
.amdhsa_kernel {NAME}
  .amdhsa_next_free_vgpr 256
  .amdhsa_next_free_sgpr 96
  .amdhsa_accum_offset 256
  .amdhsa_group_segment_fixed_size 0
  .amdhsa_kernarg_size 64
  .amdhsa_user_sgpr_count 2
  .amdhsa_user_sgpr_kernarg_segment_ptr 1
  .amdhsa_system_sgpr_workgroup_id_x 1
.end_amdhsa_kernel
"""
    return txt

if __name__ == "__main__":
    out = sys.argv[1] if len(sys.argv) > 1 else "k.s"
    cfg = {}
    for kv in sys.argv[2:]:
        k, v = kv.split("=", 1)
        cfg[k] = int(v) if v.lstrip("-").isdigit() else v
    open(out, "w").write(gen(cfg))
```

```python
import sys, math, struct

NAME = "standalone__mha_block_cached__near_ridge_kernel"
C_SCALE = math.log2(math.e) / math.sqrt(128.0)
def f32bits(x): return struct.unpack("<I", struct.pack("<f", x))[0]

class Asm:
    def __init__(self):
        self.L = []; self.lds_seq = 0; self.uid = 0
    def e(self, s): self.L.append("    " + s)
    def label(self, s): self.L.append(s + ":")
    def newlabel(self, p="L"):
        self.uid += 1; return f"{p}_{self.uid}"
    def lds(self, s):
        self.e(s); self.lds_seq += 1; return self.lds_seq
    def wait_lds(self, tok):
        self.e(f"s_waitcnt lgkmcnt({min(self.lds_seq - tok, 15)})")
    def nop(self, n):
        while n > 0:
            k = min(n, 16); self.e(f"s_nop {k-1}"); n -= k
    def text(self): return "\n".join(self.L) + "\n"

def vr(b, n): return f"v[{b}:{b+n-1}]"
def sr(b): return f"s[{b}:{b+3}]"
MF = "v_mfma_f32_16x16x32_bf16"

SLOT = 32768
LDS_BYTES = SLOT * 5
KRING, VRING = 0, 49152
XQ = 4 * SLOT
MA, MB, MSTAT = 0, 65536, 32768
LS = [3 * SLOT, 4 * SLOT, 0, 2 * SLOT, SLOT]
CSL = [0, 1, 0, 1, 0, 1, 2, 3, 4, 0, 1, 2, 3, 4, 0, 1]
CS = [LS[i] for i in CSL]
FLAGLDS = 32768 + 8192

S_K, S_V, S_WQ, S_X, S_O, S_WO, S_OUT, S_DBG, S_OL = 20, 24, 28, 32, 36, 40, 44, 48, 80
sW, sQG, sKH, sB, sH, sC, sNC, sTOFF, sTOFV, sJ = range(52, 62)
sT0, sT1, sT2, sT3 = 64, 65, 66, 67
sW2K, sB2, sQB, sNB, sROT = 68, 69, 70, 71, 73
sW4K, sF, sHR = 78, 79, 84
sW2KV = 85

vLANE = 1
vKOFF = 2
vVOFF = 4
vST = 7
vKA = 8
vONE = 12
vVA = 16
vM = 24
vMT = 26
vT2 = 28
vAL = 30
vQ = 32
vO = 64
vS = [128, 144]
vP = 160
vKF = 168
vVF = 200
vDUM = 232
vDO = 236
vTMP = 240
vNMT = 240
vLA = 248
vSTT = 6
vQACC = 64
vFR = 96
vXLD, vWLD = 12, 14
vXRD = 24
vWA = 26
vACC = 224
AB = [32, 48, 64, 80, 96, 112, 128, 144, 160, 176, 8]
AB = AB + AB[:5]
vB = 192
tAA = 2

def srd(a, s, lo, hi, off_sgpr, nbytes):
    a.e(f"s_add_u32 s{s}, s{lo}, s{off_sgpr}")
    a.e(f"s_addc_u32 s{s+1}, s{hi}, 0")
    a.e(f"s_mov_b32 s{s+2}, {nbytes:#x}")
    a.e(f"s_mov_b32 s{s+3}, 0x20000")

COST = {"v_exp_f32": 8, "v_rcp_f32": 8}
def cost(line):
    op = line.split()[0]
    if op.startswith("buffer_load"): return 16
    if op.startswith("s_"): return 2
    return COST.get(op, 4)

def gen(cfg):
    a = Asm()
    OB = cfg.get("ob", 1); HB = cfg.get("hb", 2); ST = cfg.get("stamp", 0)

    def stamp(idx):
        if not ST: return
        a.e("s_memrealtime s[74:75]"); a.e("s_waitcnt lgkmcnt(0)")
        if idx is not None: a.e(f"v_writelane_b32 v{vST}, s74, {idx}")
        else:
            a.e(f"s_add_u32 s76, s{sJ}, 8"); a.e(f"v_cmp_eq_u32 vcc, s76, v{vLANE}"); a.e(f"v_mov_b32 v{vSTT}, s74"); a.e("s_nop 1")
            a.e(f"v_cndmask_b32 v{vST}, v{vST}, v{vSTT}, vcc")
            a.e("s_memtime s[74:75]"); a.e("s_waitcnt lgkmcnt(0)"); a.e(f"v_mov_b32 v{vSTT}, s74"); a.e("s_nop 1")
            a.e(f"v_cndmask_b32 v0, v0, v{vSTT}, vcc")
    def cstamp(idx):
        if not ST: return
        a.e("s_memtime s[74:75]"); a.e("s_waitcnt lgkmcnt(0)"); a.e(f"v_writelane_b32 v{vST}, s74, {idx}")

    def item_lines(n3, with_k=True, with_v=True):
        L = []
        if with_k:
            L.append([f"s_add_u32 s{sT0}, s{sW2K}, {KRING + n3*16384}", f"s_mov_b32 m0, s{sT0}", "s_nop 0",
                      f"buffer_load_dwordx4 v{vKOFF}, {sr(S_K)}, s{sTOFF} offen nt lds"])
            L.append([f"buffer_load_dwordx4 v{vKOFF+1}, {sr(S_K)}, s{sTOFF} offen offset:1024 nt lds",
                      f"s_add_u32 s{sTOFF}, s{sTOFF}, 16384"])
        if with_v:
            L.append([f"s_add_u32 s{sT0}, s{sW2K}, {VRING + n3*16384}", f"s_mov_b32 m0, s{sT0}", "s_nop 0",
                      f"buffer_load_dwordx4 v{vVOFF}, {sr(S_V)}, s{sTOFV} offen nt lds"])
            L.append([f"buffer_load_dwordx4 v{vVOFF+1}, {sr(S_V)}, s{sTOFV} offen offset:1024 nt lds",
                      f"s_add_u32 s{sTOFV}, s{sTOFV}, 16384"])
        return L
    def emit_groups(G):
        for g in G:
            for l in g: a.e(l)
    def wo_chunk_lines(k, vdo):
        G = [[f"s_add_u32 s{sT0}, s{sW4K}, {CS[k]}", f"s_mov_b32 m0, s{sT0}",
              f"s_lshl_b32 s{sT1}, s{sHR}, 17", f"s_add_u32 s{sT1}, s{sT1}, {k*32768}", (f"s_and_b32 s{sT1}, s{sT1}, 0x7ffff" if not cfg.get("nowo") else f"s_mov_b32 s{sT1}, 0x100000"),
              f"buffer_load_dwordx4 v{vdo}, {sr(S_WO)}, s{sT1} offen lds"]]
        for i in range(1, 4):
            G.append([f"buffer_load_dwordx4 v{vdo+i}, {sr(S_WO)}, s{sT1} offen offset:{i*1024} lds"])
        return G

    a.L += [f".globl {NAME}", ".p2align 8", f".type {NAME},@function"]; a.label(NAME)
    a.e("s_cmp_ge_u32 s2, 256"); a.e("s_cbranch_scc1 L_end")
    a.e("s_load_dwordx16 s[4:19], s[0:1], 0")
    a.e("v_lshrrev_b32 v2, 6, v0")
    a.e(f"v_and_b32 v{vLANE}, 63, v0")
    a.e(f"v_readfirstlane_b32 s{sW}, v2")
    a.e(f"s_and_b32 s{sT0}, s2, 7"); a.e(f"s_lshr_b32 s{sT1}, s2, 3")
    a.e(f"s_and_b32 s{sT2}, s{sT1}, {(1<<HB)-1}")
    a.e(f"s_lshr_b32 s{sT3}, s{sT1}, {HB}")
    a.e(f"s_and_b32 s{sH}, s{sT0}, {(1<<(5-HB))-1}"); a.e(f"s_lshl_b32 s{sH}, s{sH}, {HB}"); a.e(f"s_add_u32 s{sH}, s{sH}, s{sT2}")
    a.e(f"s_lshr_b32 s{sB}, s{sT0}, {5-HB}"); a.e(f"s_lshl_b32 s{sB}, s{sB}, {5-HB}"); a.e(f"s_add_u32 s{sB}, s{sB}, s{sT3}")
    RA, RB = {2: (1, 2), 3: (2, 1), 4: (4, 1), 5: (0, 1)}[HB]
    a.e(f"s_mul_i32 s{sROT}, s{sT3}, {RA}"); a.e(f"s_mul_i32 s{sT2}, s{sT2}, {RB}"); a.e(f"s_add_u32 s{sROT}, s{sROT}, s{sT2}")
    a.e(f"s_and_b32 s{sQB}, s{sT1}, 3")
    a.e(f"s_lshr_b32 s{sT2}, s{sT1}, 2")
    a.e(f"s_and_b32 s{sNB}, s{sT2}, {(1<<(3-OB))-1}")
    a.e(f"s_lshr_b32 s{sT2}, s{sT2}, {3-OB}")
    a.e(f"s_and_b32 s{sB2}, s{sT0}, {(1<<(3-OB))-1}"); a.e(f"s_lshl_b32 s{sB2}, s{sB2}, {OB}"); a.e(f"s_add_u32 s{sB2}, s{sB2}, s{sT2}")
    a.e(f"s_lshr_b32 s{sT3}, s{sT0}, {3-OB}"); a.e(f"s_lshl_b32 s{sT3}, s{sT3}, {3-OB}"); a.e(f"s_add_u32 s{sNB}, s{sNB}, s{sT3}")
    a.e(f"s_add_u32 s{sHR}, s{sQB}, s{sNB}"); a.e(f"s_and_b32 s{sHR}, s{sHR}, 3")
    a.e(f"s_and_b32 s{sQG}, s{sW}, 3"); a.e(f"s_lshr_b32 s{sKH}, s{sW}, 2")
    a.e(f"s_lshl_b32 s{sW2K}, s{sW}, 11"); a.e(f"s_lshl_b32 s{sW4K}, s{sW}, 12")
    a.e(f"s_mov_b32 s{sC}, {f32bits(C_SCALE):#x}"); a.e(f"s_mov_b32 s{sNC}, {f32bits(-C_SCALE):#x}")
    g, l15, l8, ch, r, c8, tA, tB = [vTMP + i for i in range(8)]
    a.e(f"v_lshrrev_b32 v{g}, 4, v{vLANE}")
    a.e(f"v_and_b32 v{l15}, 15, v{vLANE}")
    a.e(f"v_lshrrev_b32 v{l8}, 3, v{vLANE}")
    a.e(f"v_and_b32 v{ch}, 7, v{vLANE}")
    a.e(f"s_and_b32 s{sT0}, s{sW}, 1"); a.e(f"s_lshl_b32 s{sT0}, s{sT0}, 3")
    a.e(f"v_lshlrev_b32 v{tA}, 1, v{g}")
    a.e(f"v_or_b32 v{tA}, s{sT0}, v{tA}")
    a.e(f"v_xor_b32 v{tA}, v{tA}, v{l15}")
    a.e(f"v_lshlrev_b32 v{tA}, 4, v{tA}")
    a.e(f"v_lshl_add_u32 v{vWLD}, v{g}, 13, v{tA}")
    a.e(f"s_lshl_b32 s{sT0}, s{sW}, 16")
    a.e(f"v_add_u32 v{vWLD}, s{sT0}, v{vWLD}")
    a.e(f"v_add_u32 v{vWLD+1}, {32768-1024}, v{vWLD}")
    a.e(f"v_lshrrev_b32 v{tA}, 1, v{l8}")
    a.e(f"v_xor_b32 v{tA}, v{tA}, v{ch}")
    a.e(f"v_lshlrev_b32 v{tA}, 4, v{tA}")
    a.e(f"v_lshl_add_u32 v{vXLD}, v{l8}, 10, v{tA}")
    a.e(f"s_lshl_b32 s{sT0}, s{sW}, 14")
    a.e(f"v_add_u32 v{vXLD}, s{sT0}, v{vXLD}")
    a.e(f"v_xor_b32 v{vXLD+1}, 64, v{vXLD}")
    a.e(f"v_add_u32 v{vXLD+1}, {8192-1024}, v{vXLD+1}")
    a.e("s_waitcnt lgkmcnt(0)")
    if ST: a.e(f"v_mov_b32 v{vST}, 0")
    stamp(0)
    a.e(f"s_lshl_b32 s{sT1}, s{sH}, 8")
    srd(a, S_WQ, 10, 11, sT1, 0x400000 - 31 * 256)
    a.e(f"s_lshl_b32 s{sT1}, s{sB}, 17")
    srd(a, S_X, 4, 5, sT1, 0x20000)
    def S_lines(st):
        slot = 1 + st % 4
        return [[f"s_add_u32 s{sT2}, s{sROT}, {st}", f"s_and_b32 s{sT2}, s{sT2}, 7",
                 f"s_add_u32 s{sT3}, s{sW2K}, {slot*SLOT}", f"s_mov_b32 m0, s{sT3}",
                 f"s_lshl_b32 s{sT1}, s{sT2}, 19", f"s_lshl_b32 s{sT2}, s{sT2}, 7",
                 f"buffer_load_dwordx4 v{vXLD}, {sr(S_X)}, s{sT2} offen lds"],
                [f"buffer_load_dwordx4 v{vXLD+1}, {sr(S_X)}, s{sT2} offen offset:1024 lds"],
                [f"s_add_u32 s{sT3}, s{sT3}, 16384", f"s_mov_b32 m0, s{sT3}", "s_nop 0",
                 f"buffer_load_dwordx4 v{vWLD}, {sr(S_WQ)}, s{sT1} offen lds"],
                [f"buffer_load_dwordx4 v{vWLD+1}, {sr(S_WQ)}, s{sT1} offen offset:1024 lds"]]
    for st in range(2): emit_groups(S_lines(st))
    a.e(f"s_lshl_b32 s{sT0}, s{sW}, 3"); a.e(f"s_and_b32 s{sT0}, s{sT0}, 8")
    a.e(f"v_add_u32 v{tA}, s{sT0}, v{g}")
    a.e(f"v_xor_b32 v{tA}, v{tA}, v{l15}")
    a.e(f"v_lshlrev_b32 v{tA}, 4, v{tA}")
    a.e(f"v_lshl_add_u32 v{vKOFF}, v{g}, 8, v{tA}")
    a.e(f"v_add_u32 v{vKOFF}, s{sW2K}, v{vKOFF}")
    a.e(f"v_xor_b32 v{vKOFF+1}, 64, v{vKOFF}")
    a.e(f"v_lshlrev_b32 v{tA}, 1, v{g}")
    a.e(f"v_xor_b32 v{tB}, v{tA}, v{l15}")
    a.e(f"v_lshlrev_b32 v{tB}, 4, v{tB}")
    a.e(f"v_lshl_add_u32 v{vVOFF}, v{g}, 8, v{tB}")
    a.e(f"v_add_u32 v{vVOFF}, s{sW2K}, v{vVOFF}")
    a.e(f"v_xor_b32 v{vVOFF+1}, 128, v{vVOFF}")
    a.e(f"v_xor_b32 v{tB}, v{tA}, v{ch}")
    a.e(f"v_lshlrev_b32 v{tB}, 4, v{tB}")
    a.e(f"v_lshl_add_u32 v{vDO}, v{l8}, 10, v{tB}")
    for i in range(1, 4): a.e(f"v_add_u32 v{vDO+i}, {i*(8192-1024)}, v{vDO}")
    a.e(f"s_lshl_b32 s{sT0}, s{sB}, 5"); a.e(f"s_add_u32 s{sT0}, s{sT0}, s{sH}"); a.e(f"s_lshl_b32 s{sT1}, s{sT0}, 19")
    srd(a, S_K, 6, 7, sT1, 0x80000 if not cfg.get("nokv") else 16384)
    srd(a, S_V, 8, 9, sT1, 0x80000 if not cfg.get("nokv") else 16384)
    a.e(f"s_mov_b32 s{sTOFF}, 0"); a.e(f"s_mov_b32 s{sTOFV}, 0")
    a.e(f"s_lshl_b32 s{sT1}, s{sB}, 21"); a.e(f"s_lshl_b32 s{sT0}, s{sH}, 13"); a.e(f"s_add_u32 s{sT1}, s{sT1}, s{sT0}")
    srd(a, S_O, 18, 19, sT1, 3 * 262144 + 8192)
    a.e(f"s_lshl_b32 s{sT1}, s{sB2}, 21"); a.e(f"s_lshl_b32 s{sT0}, s{sQB}, 18"); a.e(f"s_add_u32 s{sT1}, s{sT1}, s{sT0}")
    a.e(f"s_lshl_b32 s{sT0}, s{sW}, 15"); a.e(f"s_add_u32 s{sT1}, s{sT1}, s{sT0}")
    srd(a, S_OL, 18, 19, sT1, 32768)
    a.e(f"s_lshl_b32 s{sT0}, s{sW}, 19"); a.e(f"s_lshl_b32 s{sT1}, s{sNB}, 7"); a.e(f"s_add_u32 s{sT0}, s{sT0}, s{sT1}")
    srd(a, S_WO, 12, 13, sT0, 511 * 1024 + 128)
    a.e(f"s_lshl_b32 s{sT0}, s{sB2}, 17"); a.e(f"s_lshl_b32 s{sT1}, s{sQB}, 15"); a.e(f"s_add_u32 s{sT0}, s{sT0}, s{sT1}")
    a.e(f"s_lshl_b32 s{sT1}, s{sNB}, 7"); a.e(f"s_add_u32 s{sT0}, s{sT0}, s{sT1}")
    srd(a, S_OUT, 14, 15, sT0, 31 * 1024 + 128)
    a.e(f"s_mov_b32 s{S_DBG}, s16"); a.e(f"s_mov_b32 s{S_DBG+1}, s17"); a.e(f"s_mov_b32 s{S_DBG+2}, 256"); a.e(f"s_mov_b32 s{S_DBG+3}, 0x20000")
    for st in range(2, 4): emit_groups(S_lines(st))
    T1EARLY = cfg.get("t1early", 1)
    emit_groups(item_lines(0, with_v=False))
    if T1EARLY: emit_groups(item_lines(1, with_v=False))
    a.e(f"buffer_load_dword v{vDUM}, v{vVOFF}, {sr(S_V)}, 0 offen nt")

    a.e(f"v_bfe_u32 v{r}, v{vLANE}, 2, 2")
    a.e(f"v_and_b32 v{c8}, 3, v{vLANE}")
    a.e(f"v_lshlrev_b32 v{c8}, 3, v{c8}")
    a.e(f"s_lshl_b32 s{sT1}, s{sKH}, 7")
    kr = ch
    a.e(f"v_and_b32 v{kr}, 1, v{g}")
    a.e(f"v_lshl_add_u32 v{kr}, v{kr}, 2, v{r}")
    a.e(f"v_lshl_add_u32 v{tA}, v{kr}, 5, v{c8}")
    a.e(f"v_xor_b32 v{tA}, s{sT1}, v{tA}")
    a.e(f"v_lshl_add_u32 v{tB}, v{g}, 3, v{r}")
    a.e(f"v_lshl_add_u32 v{tB}, v{tB}, 8, v{tA}")
    a.e(f"v_add_u32 v{tB}, 16384, v{tB}")
    for tt in range(4): a.e(f"v_xor_b32 v{vWA+tt}, {tt<<5}, v{tB}")
    a.e(f"v_lshl_add_u32 v{tB}, v{g}, 2, v{r}")
    a.e(f"v_lshl_add_u32 v{tB}, v{tB}, 8, v{tA}")
    a.e(f"s_lshl_b32 s{sT0}, s{sKH}, 13"); a.e(f"s_add_u32 s{sT2}, s{sT0}, {VRING}")
    a.e(f"v_add_u32 v{tB}, s{sT2}, v{tB}")
    for aa in range(8): a.e(f"v_xor_b32 v{vVA+aa}, {aa<<5}, v{tB}")
    a.e(f"v_lshrrev_b32 v{tA}, 1, v{l15}")
    a.e(f"v_xor_b32 v{tA}, v{tA}, v{g}")
    a.e(f"v_lshlrev_b32 v{tA}, 4, v{tA}")
    a.e(f"v_lshl_add_u32 v{tA}, v{l15}, 7, v{tA}")
    a.e(f"s_lshl_b32 s{sT2}, s{sQG}, 12")
    a.e(f"v_add_u32 v{vXRD}, s{sT2}, v{tA}")
    a.e(f"v_xor_b32 v{vXRD+1}, 64, v{vXRD}")
    kq = l8
    a.e(f"v_xor_b32 v{kq}, v{g}, v{l15}")
    a.e(f"v_lshlrev_b32 v{kq}, 4, v{kq}")
    a.e(f"v_lshl_add_u32 v{kq}, v{l15}, 8, v{kq}")
    a.e(f"v_add_u32 v{tA}, s{sT0}, v{kq}")
    for ds in range(4): a.e(f"v_xor_b32 v{vKA+ds}, {ds<<6}, v{tA}")
    stamp(1)

    order = ["S0", "S1", "S2", "S3", "T0", "S4", "S5", "S6", "S7", "T1", "T2", "N0"]
    cnt = {n: 4 for n in order}
    cnt["N0"] = 0
    cnt["T0"] = (4 if T1EARLY else 2) + 1
    cnt["T1"] = 0 if T1EARLY else 2
    cur_hi = [0]
    def frag_regs(st, ks):
        b = vFR + (st % 2) * 48 + ks * 24
        return [b, b + 4], [b + 8 + 4 * tt for tt in range(4)]
    def read_ops(st):
        base = ((1 + st % 4) * SLOT) & 0xffff
        ops = []
        for ks in range(2):
            xs, ws_ = frag_regs(st, ks)
            for qt in range(2):
                ops.append(f"ds_read_b128 {vr(xs[qt],4)}, v{vXRD+ks} offset:{base+qt*2048}")
            for tt in range(4):
                ops.append(f"ds_read_b64_tr_b16 {vr(ws_[tt],2)}, v{vWA+tt} offset:{base+ks*8192}")
                ops.append(f"ds_read_b64_tr_b16 {vr(ws_[tt]+2,2)}, v{vWA+tt} offset:{base+ks*8192+1024}")
        return ops
    def set_hi(st):
        hi_add = ((1 + st % 4) * SLOT) & ~0xffff
        if hi_add != cur_hi[0]:
            a.e(f"s_mov_b32 s{sT0}, {hi_add - cur_hi[0]}")
            for rr in [vXRD, vXRD + 1] + [vWA + i for i in range(4)]:
                a.e(f"v_add_u32 v{rr}, s{sT0}, v{rr}")
            cur_hi[0] = hi_add
    def sync_step(st):
        issued = 5 + max(st - 1, 0)
        idx = order.index(f"S{st}")
        after = sum(cnt[n] for n in order[idx + 1:issued])
        a.e(f"s_waitcnt vmcnt({after}) lgkmcnt(0)")
        a.e("s_barrier")
        if st == 0: stamp(2); cstamp(52)
        if st == 4: stamp(3)
    def next_groups(st):
        n = order[4 + st]
        if n[0] == "S": return S_lines(int(n[1]))
        if n == "T1" and not T1EARLY: return item_lines(1, with_v=False)
        if n == "T2": return item_lines(2)
        return []
    sync_step(0)
    ops = read_ops(0)
    for o in ops[:15]: a.e(o)
    a.e("s_waitcnt lgkmcnt(8)")
    for o in ops[15:]: a.e(o)
    for st in range(8):
        ops = []; dma = []
        if st < 7:
            set_hi(st + 1)
            sync_step(st + 1)
            ops = read_ops(st + 1)
            dma = next_groups(st + 1)
        else:
            a.e("s_waitcnt lgkmcnt(0)")
            a.e("s_barrier")
        m = 0
        for ks in range(2):
            xs, ws_ = frag_regs(st, ks)
            for tt in range(4):
                for qt in range(2):
                    acc = vQACC + (tt * 2 + qt) * 4
                    cin = "0" if (st == 0 and ks == 0) else vr(acc, 4)
                    a.e(f"{MF} {vr(acc,4)}, {vr(ws_[tt],4)}, {vr(xs[qt],4)}, {cin}")
                    if ops and m >= 6: a.e("s_waitcnt lgkmcnt(10)")
                    nrd = 2 if m < 8 else 1
                    for o in ops[:nrd]: a.e(o)
                    ops = ops[nrd:]
                    if dma and m >= 2 and m % 2 == 0:
                        for l in dma.pop(0): a.e(l)
                    if st == 7 and m < 8:
                        for i in range(4): a.e(f"v_mov_b32 v{vO+32+4*m+i}, 0")
                    m += 1
        assert not ops and not dma, (len(ops), len(dma))
    stamp(4); cstamp(53)
    qw = tA
    a.e(f"v_lshrrev_b32 v{qw}, 1, v{g}")
    a.e(f"v_xor_b32 v{qw}, v{qw}, v{l15}")
    a.e(f"v_lshlrev_b32 v{qw}, 4, v{qw}")
    a.e(f"v_lshl_add_u32 v{qw}, v{l15}, 8, v{qw}")
    a.e(f"v_and_b32 v{tB}, 1, v{g}")
    a.e(f"v_lshl_add_u32 v{qw}, v{tB}, 3, v{qw}")
    a.e(f"s_lshl_b32 s{sT0}, s{sQG}, 13"); a.e(f"s_add_u32 s{sT0}, s{sT0}, {XQ}")
    a.e(f"s_lshl_b32 s{sT1}, s{sKH}, 7")
    a.e(f"v_xor_b32 v{qw}, s{sT1}, v{qw}")
    a.e(f"v_add_u32 v{qw}, s{sT0}, v{qw}")
    a.e(f"v_add_u32 v{kq}, s{sT0}, v{kq}")
    for tt in range(4):
        a.e(f"v_xor_b32 v{tB}, {tt<<5}, v{qw}")
        for qt in range(2):
            acc = vQACC + (tt * 2 + qt) * 4
            d = vQ + (tt * 2 + qt) * 2
            for i in range(4): a.e(f"v_mul_f32 v{acc+i}, s{sC}, v{acc+i}")
            a.e(f"v_cvt_pk_bf16_f32 v{d}, v{acc}, v{acc+1}")
            a.e(f"v_cvt_pk_bf16_f32 v{d+1}, v{acc+2}, v{acc+3}")
            a.e(f"ds_write_b64 v{tB}, {vr(d,2)} offset:{qt*4096}")
    for i in range(4): a.e(f"v_mov_b32 v{vONE+i}, 0x3f803f80")
    for i in range(32): a.e(f"v_mov_b32 v{vO+i}, 0")
    a.e(f"s_mov_b32 s{sJ}, 0")
    for ds in range(1, 4): a.e(f"v_xor_b32 v{vTMP+8+ds}, {ds<<6}, v{kq}")
    a.e(f"s_waitcnt vmcnt({cnt['T1'] + 4}) lgkmcnt(0)")
    a.e("s_barrier")
    for qt in range(2):
        for ds in range(4):
            ad = kq if ds == 0 else vTMP + 8 + ds
            a.e(f"ds_read_b128 {vr(vQ+(qt*4+ds)*4,4)}, v{ad} offset:{qt*4096}")
    a.e("s_waitcnt lgkmcnt(4)")
    for kt in range(2):
        for ds in range(4):
            a.e(f"ds_read_b128 {vr(vKF+(kt*4+ds)*4,4)}, v{vKA+ds} offset:{KRING + kt*4096}")
    for i in range(8): a.e(f"v_mov_b32 v{vLA+i}, 0")
    stamp(6); cstamp(50)

    tagpar = {}
    def els_(): return [(kt * 2 + qt) * 4 + rr for qt in range(2) for kt in range(2) for rr in range(4)]
    def first_ref():
        for qt in range(2):
            xgroup("v_max_f32", vMT + qt, vT2)
            a.e(f"v_mov_b32 v{vM+qt}, v{vMT+qt}")
            for i in range(4): a.e(f"v_sub_f32 v{vNMT+4*qt+i}, 0, v{vMT+qt}")
            for k_ in range(8):
                e_ = vS[0] + els_()[8 * qt + k_]
                a.e(f"v_sub_f32 v{e_}, v{e_}, v{vMT+qt}")
    def iteration(i6, do_qk, do_pv, do_kr, wait, issue, tag, extra=None, post=None):
        par = i6 % 2
        slot = ((i6 + 1) % 3) * 16384
        Sn, Sp = vS[par], vS[1 - par]
        a.lds_seq = 0
        a.e(f"s_waitcnt vmcnt({wait}) lgkmcnt(0)")
        a.e("s_barrier")
        if ST >= 2: stamp(None)
        if ST == 1 and tag in ("p29", "p32"): cstamp(54 if tag == "p29" else 55)
        G = list(issue) if issue else []
        els = [(kt * 2 + qt) * 4 + rr for qt in range(2) for kt in range(2) for rr in range(4)]
        F1 = []
        if do_pv:
            for k_ in range(16):
                F1.append(f"v_exp_f32 v{Sp+els[k_]}, v{Sp+els[k_]}")
                if k_ >= 2 and k_ % 2 == 0:
                    p = k_ // 2 - 1
                    F1.append(f"v_cvt_pk_bf16_f32 v{vP+p}, v{Sp+els[2*p]}, v{Sp+els[2*p+1]}")
            F1.append("s_nop 0")
            F1.append(f"v_cvt_pk_bf16_f32 v{vP+7}, v{Sp+els[14]}, v{Sp+els[15]}")
        vtok = {}
        def vread(h):
            aa, sec = h // 2, h % 2
            tk = a.lds(f"ds_read_b64_tr_b16 {vr(vVF+4*aa+2*sec,2)}, v{vVA+aa} offset:{slot+sec*4096}")
            if sec: vtok[aa] = tk
        def drain(F, budget):
            used = 0
            while F and used < budget:
                l = F.pop(0); a.e(l); used += cost(l)
        if do_qk:
            m = 0
            for kt in range(2):
                for qt in range(2):
                    acc = Sn + (kt * 2 + qt) * 4
                    for ds in range(4):
                        cin = ("0" if tag == "i0" else vr(vNMT + 4 * qt, 4)) if ds == 0 else vr(acc, 4)
                        a.e(f"{MF} {vr(acc,4)}, {vr(vKF+(kt*4+ds)*4,4)}, {vr(vQ+(qt*4+ds)*4,4)}, {cin}")
                        if G and m % 2 == 0:
                            for l in G.pop(0): a.e(l)
                        if do_pv:
                            if m == 15: a.e("s_waitcnt lgkmcnt(14)")
                            vread(m)
                            drain(F1, cfg.get("gap1", 8))
                        m += 1
        else:
            for h in range(15): vread(h)
            emit_groups(G); G = []
            drain(F1, 64)
            a.e("s_waitcnt lgkmcnt(14)")
            vread(15)
        emit_groups(G)
        if extra: extra()
        drain(F1, 10000)
        F2 = []
        F3 = []
        if do_qk:
            for qt in range(2):
                e_ = [Sn + els[8 * qt + k_] for k_ in range(8)]
                F3.append(f"v_max3_f32 v{vMT+qt}, v{e_[0]}, v{e_[1]}, v{e_[2]}")
                F3.append(f"v_max3_f32 v{vMT+qt}, v{e_[3]}, v{e_[4]}, v{vMT+qt}")
                F3.append(f"v_max3_f32 v{vMT+qt}, v{e_[5]}, v{e_[6]}, v{vMT+qt}")
                F3.append(f"v_max_f32 v{vMT+qt}, v{e_[7]}, v{vMT+qt}")
            F3.append(f"v_max_f32 v{vAL}, v{vMT}, v{vMT+1}")
            F3.append(f"v_cmp_lt_f32 vcc, 0x41000000, v{vAL}")
        def kread(x):
            kt, ds = x // 4, x % 4
            a.lds(f"ds_read_b128 {vr(vKF+x*4,4)}, v{vKA+ds} offset:{KRING+slot+kt*4096}")
        if do_pv:
            a.nop(2)
            for qt in range(2):
                a.e(f"{MF} {vr(vLA+4*qt,4)}, {vr(vONE,4)}, {vr(vP+4*qt,4)}, {vr(vLA+4*qt,4)}")
            m = 0
            for aa in range(8):
                a.wait_lds(vtok[aa])
                for qt in range(2):
                    acc = vO + (aa * 2 + qt) * 4
                    a.e(f"{MF} {vr(acc,4)}, {vr(vVF+4*aa,4)}, {vr(vP+4*qt,4)}, {vr(acc,4)}")
                    if do_kr and 2 <= m < 10: kread(m - 2)
                    if 4 <= m < 15: drain(F3, cfg.get("gap2", 4))
                    m += 1
        else:
            if do_kr:
                for x in range(8): kread(x)
            a.nop(4)
        drain(F3, 10000)
        if post: post()
        a.e(f"s_add_u32 s{sJ}, s{sJ}, 1")
        if tag == "i0":
            first_ref()
        elif do_qk:
            a.e(f"s_cbranch_vccnz L_resc_{tag}")
            a.label(f"L_back_{tag}")
            tagpar[tag] = par
    def xgroup(op, reg, tmp):
        a.e(f"v_mov_b32 v{tmp}, v{reg}")
        a.nop(2)
        a.e(f"v_permlane32_swap_b32 v{reg}, v{tmp}")
        a.e(f"{op} v{reg}, v{reg}, v{tmp}")
        a.e(f"v_mov_b32 v{tmp}, v{reg}")
        a.nop(2)
        a.e(f"v_permlane16_swap_b32 v{reg}, v{tmp}")
        a.e(f"{op} v{reg}, v{reg}, v{tmp}")
    def rescale_code(par):
        a.label(f"L_resc{par}")
        for qt in range(2):
            xgroup("v_max_f32", vMT + qt, vT2)
            a.e(f"v_max_f32 v{vMT+qt}, 0, v{vMT+qt}")
            a.e(f"v_exp_f32 v{vAL+qt}, -v{vMT+qt}")
            a.e(f"v_add_f32 v{vM+qt}, v{vM+qt}, v{vMT+qt}")
            for i in range(4): a.e(f"v_sub_f32 v{vNMT+4*qt+i}, 0, v{vM+qt}")
            for k_ in range(8):
                e_ = vS[par] + els_()[8 * qt + k_]
                a.e(f"v_sub_f32 v{e_}, v{e_}, v{vMT+qt}")
        for qt in range(2):
            for i in range(4): a.e(f"v_mul_f32 v{vLA+4*qt+i}, v{vLA+4*qt+i}, v{vAL+qt}")
        for aa in range(8):
            for qt in range(2):
                for i in range(4):
                    a.e(f"v_mul_f32 v{vO+(aa*2+qt)*4+i}, v{vO+(aa*2+qt)*4+i}, v{vAL+qt}")
        a.e("s_setpc_b64 s[88:89]")
    def rescale_stub(tag):
        a.label(f"L_resc_{tag}")
        a.e("s_getpc_b64 s[88:89]")
        a.e(f"s_add_u32 s88, s88, L_back_{tag}-L_resc_{tag}-4")
        a.e("s_addc_u32 s89, s89, -1")
        a.e(f"s_branch L_resc{tagpar[tag]}")
    TCH = cfg.get("touch", 1)
    def touches():
        ta = vT2
        a.e(f"s_lshl_b32 s{sT0}, s{sB}, 21"); a.e(f"s_add_u32 s{sT0}, s{sT0}, {(1<<20)+65536}")
        a.e(f"v_mov_b32 v{ta}, s{sT0}")
        a.e(f"s_lshl_b32 s{sT0}, s{sB2}, 21"); a.e(f"s_add_u32 s{sT0}, s{sT0}, {(1<<20)+65536}")
        a.e(f"v_mov_b32 v{ta+1}, s{sT0}")
        a.e(f"v_mov_b32 v{ta+2}, 0")
        a.e(f"global_load_dword v{vDUM}, v{ta}, s[18:19]")
        a.e(f"global_load_dword v{vDUM}, v{ta+1}, s[18:19]")
        a.e(f"buffer_load_dword v{vDUM}, v{ta+2}, {sr(S_OUT)}, 0 offen")
        a.e(f"buffer_load_dword v{vDUM}, v{ta+2}, {sr(S_DBG)}, 0 offen sc1")
    PF = cfg.get("pf", -1)
    def wo_prefetch():
        lb = a.newlabel("L_pf")
        a.e(f"s_cmp_lg_u32 s{sJ}, {PF}"); a.e(f"s_cbranch_scc1 {lb}")
        ta = vT2
        nl = 1 << (3 - OB)
        rows_per_wave = 64 // nl
        a.e(f"s_lshr_b32 s{sT0}, s2, 3"); a.e(f"s_lshl_b32 s{sT0}, s{sT0}, 3"); a.e(f"s_add_u32 s{sT0}, s{sT0}, s{sW}")
        for rep in range(nl * 4096 // (64 * 256)):
            pass
        nrep = 4096 * nl // (256 * 64)
        a.e(f"s_mul_i32 s{sT0}, s{sT0}, {rows_per_wave * nrep * 1024}")
        a.e(f"s_lshr_b32 s{sT1}, s{sNB}, {3-OB}"); a.e(f"s_lshl_b32 s{sT1}, s{sT1}, {3-OB+7}")
        a.e(f"s_add_u32 s{sT0}, s{sT0}, s{sT1}")
        a.e(f"v_lshrrev_b32 v{ta}, {3-OB}, v{vLANE}")
        a.e(f"v_and_b32 v{ta+1}, {nl-1}, v{vLANE}")
        a.e(f"v_lshlrev_b32 v{ta+1}, 7, v{ta+1}")
        a.e(f"v_lshl_add_u32 v{ta}, v{ta}, 10, v{ta+1}")
        a.e(f"v_add_u32 v{ta}, s{sT0}, v{ta}")
        for rep in range(nrep):
            a.e(f"global_load_dword v{vDUM}, v{ta}, s[12:13]")
            if rep + 1 < nrep: a.e(f"v_add_u32 v{ta}, {rows_per_wave*1024}, v{ta}")
        a.label(lb)
    cur = [0]
    def aaddr_setup():
        tAT = vT2
        a.e(f"v_lshrrev_b32 v{tAT}, 4, v{vLANE}")
        a.e(f"v_bfe_u32 v{tAT+1}, v{vLANE}, 2, 2")
        a.e(f"v_lshl_add_u32 v{tAT+2}, v{tAT}, 2, v{tAT+1}")
        a.e(f"v_bfe_u32 v{tAT+3}, v{tAT+2}, 1, 2")
        a.e(f"v_and_b32 v{tAT}, 3, v{vLANE}")
        a.e(f"v_lshlrev_b32 v{tAT}, 3, v{tAT}")
        a.e(f"v_lshl_add_u32 v{tAT}, v{tAT+3}, 5, v{tAT}")
        a.e(f"v_lshl_add_u32 v{tAT}, v{tAT+2}, 7, v{tAT}")
        a.e(f"v_add_u32 v{tAT}, s{sW4K}, v{tAT}")
        for nt in range(4): a.e(f"v_xor_b32 v{tAA+nt}, {nt<<5}, v{tAT}")
    def a_reads(k):
        so = CS[k]
        win, base = so & ~0xffff, so & 0xffff
        if win != cur[0]:
            a.e(f"s_mov_b32 s{sT0}, {win - cur[0]}")
            for nt in range(4): a.e(f"v_add_u32 v{tAA+nt}, s{sT0}, v{tAA+nt}")
            cur[0] = win
        fb = AB[k]
        for nt in range(4):
            a.e(f"ds_read_b64_tr_b16 {vr(fb+4*nt,2)}, v{tAA+nt} offset:{base}")
            a.e(f"ds_read_b64_tr_b16 {vr(fb+4*nt+2,2)}, v{tAA+nt} offset:{base+2048}")
    tags = []
    iteration(0, True, False, True, 4, item_lines(0), "i0", extra=(touches if TCH == 2 else None))
    a.L.append(".p2align 6")
    a.label("L_loop")
    for u in range(6):
        i6 = 1 + u
        iteration(i6, True, True, True, 4, item_lines(i6 % 3), f"l{u}", extra=(wo_prefetch if (PF > 0 and u == (PF - 1) % 6) else None))
        tags.append(f"l{u}")
    a.e(f"s_cmp_lt_u32 s{sJ}, {cfg.get('short', 25)}"); a.e("s_cbranch_scc1 L_loop")
    E0 = cfg.get("e0", 27)
    icnt = lambda n: 0 if n > 33 else (2 if n > 31 else 4)
    extra_ops = {E0: 8 if TCH == 1 else 4, E0 + 1: 4}
    for i in range(25, 33):
        w_ = icnt(i + 2) + sum(extra_ops.get(j, 0) for j in (i - 2, i - 1))
        iss = item_lines(i % 3, with_k=(i + 3 < 32)) if i + 3 <= 33 else None
        ex = None; post = None
        if i == E0: ex = lambda: (emit_groups(wo_chunk_lines(0, vDO)), touches() if TCH == 1 else None)
        if i == E0 + 1: ex = lambda: emit_groups(wo_chunk_lines(1, vDO))
        if i == 31: post = lambda: (aaddr_setup(), a_reads(0), a.e("s_waitcnt lgkmcnt(4)"), a_reads(1))
        if i == 32: iss = wo_chunk_lines(2, vDO) + wo_chunk_lines(3, vDO)
        iteration(i, i < 32, True, i < 31, w_, iss, f"p{i}", extra=ex, post=post)
        if i < 32: tags.append(f"p{i}")
    a.e("s_branch L_loopdone")
    for tag in tags: rescale_stub(tag)
    rescale_code(0); rescale_code(1)
    a.label("L_loopdone")
    stamp(41); cstamp(51)
    if ST >= 2:
        a.e(f"s_lshl_b32 s76, s2, 3"); a.e(f"s_add_u32 s76, s76, s{sW}"); a.e("s_lshl_b32 s76, s76, 8"); a.e(f"s_add_u32 s76, s76, {65<<20}")
        a.e(f"v_lshlrev_b32 v{vSTT}, 2, v{vLANE}"); a.e(f"v_add_u32 v{vSTT}, s76, v{vSTT}")
        a.e(f"global_store_dword v{vSTT}, v0, s[18:19]"); a.e("s_waitcnt vmcnt(0)")

    ea = 128; mp = 132; mx = 136; st4 = 140
    a.e(f"v_lshlrev_b32 v{ea}, 4, v{vLANE}")
    a.e(f"s_lshl_b32 s{sT0}, s{sQG}, 13")
    a.e(f"v_add_u32 v{ea+1}, s{sT0}, v{ea}")
    a.e(f"s_cmp_eq_u32 s{sKH}, 0")
    a.e(f"s_cselect_b32 s{sT0}, {MA}, {MB}")
    a.e(f"s_cselect_b32 s{sT1}, {MB}, {MA}")
    a.e(f"v_add_u32 v{ea+2}, s{sT1}, v{ea+1}")
    a.e(f"v_add_u32 v{ea+1}, s{sT0}, v{ea+1}")
    a.e(f"s_lshl_b32 s{sT0}, s{sW}, 10"); a.e(f"s_add_u32 s{sT0}, s{sT0}, {MSTAT}")
    a.e(f"v_add_u32 v{ea+3}, s{sT0}, v{ea}")
    for i in range(8):
        a.e(f"ds_write_b128 v{ea+1}, {vr(vO+32+4*i,4)} offset:{i*1024}")
    for qt in range(2):
        a.e(f"v_mov_b32 v{st4+qt}, v{vM+qt}"); a.e(f"v_mov_b32 v{st4+2+qt}, v{vLA+4*qt}")
    a.e(f"ds_write_b128 v{ea+3}, {vr(st4,4)}")
    a.e(f"v_xor_b32 v{ea+3}, 4096, v{ea+3}")
    a.e("s_waitcnt lgkmcnt(0)"); a.e("s_barrier")
    a.e(f"ds_read_b128 {vr(mp,4)}, v{ea+3}")
    for i in range(8):
        a.e(f"ds_read_b128 {vr(vKF+4*i,4)}, v{ea+2} offset:{i*1024}")
    a.e(f"s_lshl_b32 s{sT0}, s{sQG}, 18"); a.e(f"s_lshl_b32 s{sT1}, s{sKH}, 12"); a.e(f"s_add_u32 s{sT2}, s{sT0}, s{sT1}")
    a.e("s_waitcnt lgkmcnt(8)")
    fs, fp = vT2, vAL
    for qt in range(2):
        a.e(f"v_max_f32 v{mx+qt}, v{vM+qt}, v{mp+qt}")
        a.e(f"v_sub_f32 v{fs+qt}, v{vM+qt}, v{mx+qt}")
        a.e(f"v_sub_f32 v{fp+qt}, v{mp+qt}, v{mx+qt}")
        a.e(f"v_exp_f32 v{fs+qt}, v{fs+qt}")
        a.e(f"v_exp_f32 v{fp+qt}, v{fp+qt}")
    for qt in range(2):
        a.e(f"v_mul_f32 v{mx+qt}, v{st4+2+qt}, v{fs+qt}")
        a.e(f"v_fma_f32 v{mx+qt}, v{mp+2+qt}, v{fp+qt}, v{mx+qt}")
    for qt in range(2): a.e(f"v_rcp_f32 v{mx+qt}, v{mx+qt}")
    a.nop(1)
    for qt in range(2):
        a.e(f"v_mul_f32 v{fs+qt}, v{fs+qt}, v{mx+qt}")
        a.e(f"v_mul_f32 v{fp+qt}, v{fp+qt}, v{mx+qt}")
    for aa in range(4):
        for qt in range(2):
            for i in range(4):
                a.e(f"v_mul_f32 v{vO+(aa*2+qt)*4+i}, v{vO+(aa*2+qt)*4+i}, v{fs+qt}")
    for mm in range(2):
        a.e(f"s_waitcnt lgkmcnt({4-4*mm})")
        for x in range(16 * mm, 16 * mm + 16):
            qt = (x // 4) % 2
            a.e(f"v_fma_f32 v{vO+x}, v{vKF+x}, v{fp+qt}, v{vO+x}")
        for qt in range(2):
            f = 2 * mm + qt
            for half in range(2):
                src = vO + ((2 * mm + half) * 2 + qt) * 4
                a.e(f"v_cvt_pk_bf16_f32 v{vVF+4*f+2*half}, v{src}, v{src+1}")
                a.e(f"v_cvt_pk_bf16_f32 v{vVF+4*f+2*half+1}, v{src+2}, v{src+3}")
            a.e(f"buffer_store_dwordx4 {vr(vVF+4*f,4)}, v{ea}, {sr(S_O)}, s{sT2} offen offset:{f*1024} sc1")
    stamp(42)
    tDO, tBO = 24, 6
    for i in range(4): a.e(f"v_mov_b32 v{tDO+i}, v{vDO+i}")
    vFD, vFC, vFG = 28, 29, 31
    a.e(f"v_lshlrev_b32 v{tBO}, 4, v{vLANE}")
    a.e(f"s_lshl_b32 s{sT0}, s{sB2}, 5"); a.e(f"s_lshl_b32 s{sT1}, s{sW}, 2"); a.e(f"s_add_u32 s{sT0}, s{sT0}, s{sT1}")
    a.e(f"v_mov_b32 v{vFG}, s{sT0}")
    a.e("s_waitcnt vmcnt(8)")
    a_reads(2)
    a.e("s_waitcnt lgkmcnt(0)")
    emit_groups(wo_chunk_lines(4, tDO))
    a.e("s_waitcnt vmcnt(8)")
    a_reads(3)
    a.e("s_waitcnt lgkmcnt(0)")
    emit_groups(wo_chunk_lines(5, tDO))
    a.e("s_waitcnt vmcnt(8)")
    a.e("s_barrier")
    a.e(f"s_cmp_lg_u32 s{sW}, 0"); a.e("s_cbranch_scc1 L_noflag")
    a.e(f"s_lshl_b32 s{sT0}, s{sB}, 5"); a.e(f"s_add_u32 s{sT0}, s{sT0}, s{sH}")
    a.e(f"v_mov_b32 v{vFD}, 1"); a.e(f"v_mov_b32 v{vFC}, s{sT0}")
    a.e("s_mov_b64 exec, 1")
    a.e(f"buffer_store_byte v{vFD}, v{vFC}, {sr(S_DBG)}, 0 offen sc1")
    a.e("s_mov_b64 exec, -1")
    a.label("L_noflag")
    stamp(43); cstamp(56)
    for c_ in (6, 7, 8): emit_groups(wo_chunk_lines(c_, tDO))
    for c_ in range(4, 11):
        a.e("s_waitcnt vmcnt(16)")
        a_reads(c_)
        a.e("s_waitcnt lgkmcnt(0)")
        emit_groups(wo_chunk_lines(c_ + 5, tDO))
    stamp(44); cstamp(57)
    def poll():
        a.e(f"buffer_load_dword v{vFD}, v{vFG}, {sr(S_DBG)}, 0 offen sc1")
        a.e("s_waitcnt vmcnt(0)")
        a.e(f"v_alignbyte_b32 v{vFD}, v{vFD}, v{vFD}, s{sHR}")
        a.e("s_nop 0")
        a.e(f"v_readfirstlane_b32 s{sF}, v{vFD}")
        a.e("s_nop 1")
    def wait_head(hh):
        a.label(f"L_p{hh}")
        a.e(f"s_and_b32 s{sT0}, s{sF}, {0xff << (8*hh):#x}")
        a.e(f"s_cbranch_scc1 L_go{hh}")
        a.e(f"s_sleep {cfg.get('psleep', 4)}")
        poll()
        a.e(f"s_branch L_p{hh}")
        a.label(f"L_go{hh}")
        a.e(f"s_add_u32 s{sT1}, s{sHR}, {hh}"); a.e(f"s_and_b32 s{sT1}, s{sT1}, 3"); a.e(f"s_lshl_b32 s{sT1}, s{sT1}, 13")
        a.e(f"s_add_u32 s{sT2}, s{sT1}, 4096")
    def b_load(fr):
        i = fr % 8
        a.e(f"buffer_load_dwordx4 {vr(vB+4*i,4)}, v{tBO}, {sr(S_OL)}, s{sT1 if i < 4 else sT2} offen offset:{(i%4)*1024} sc1")
    poll()
    wait_head(0)
    for fr in range(8): b_load(fr)
    stamp(45)
    for k in range(16):
        a.e(f"s_waitcnt vmcnt({min(6, 30 - 2*k)})" + (" lgkmcnt(0)" if k == 11 else ""))
        fb = AB[k]
        for nt in range(4):
            for qt in range(2):
                acc = vACC + (nt * 2 + qt) * 4
                cin = "0" if k == 0 else vr(acc, 4)
                a.e(f"{MF} {vr(acc,4)}, {vr(fb+4*nt,4)}, {vr(vB+4*((2*k+qt)%8),4)}, {cin}")
        if k + 4 <= 15:
            if k % 4 == 0: wait_head(k // 4 + 1)
            b_load(2 * k + 8); b_load(2 * k + 9)
        if k < 5:
            if k >= 1: a.e("s_waitcnt lgkmcnt(4)")
            a_reads(11 + k)
    stamp(46); cstamp(58)
    a.e("s_barrier")
    q, wa, tq, gg = 2, 3, 4, 5
    a.e(f"v_lshrrev_b32 v{gg}, 4, v{vLANE}")
    a.e(f"v_and_b32 v{q}, 15, v{vLANE}")
    a.e(f"v_xor_b32 v{wa}, v{q}, v{gg}")
    a.e(f"v_lshlrev_b32 v{wa}, 4, v{wa}")
    a.e(f"v_lshl_add_u32 v{wa}, v{gg}, 9, v{wa}")
    a.e(f"s_lshl_b32 s{sT0}, s{sW}, 13")
    a.e(f"v_add_u32 v{wa}, s{sT0}, v{wa}")
    a.nop(2)
    for nt in range(4):
        a.e(f"v_xor_b32 v{tq}, {nt*64}, v{wa}")
        for qt in range(2):
            a.e(f"ds_write_b128 v{tq}, {vr(vACC+(nt*2+qt)*4,4)} offset:{nt*2048+qt*256}")
    a.e(f"s_lshl_b32 s{sT0}, s{sW}, 2")
    a.e(f"v_add_u32 v{gg}, s{sT0}, v{gg}")
    a.e(f"v_xor_b32 v{wa}, v{gg}, v{q}")
    a.e(f"v_lshlrev_b32 v{wa}, 4, v{wa}")
    a.e(f"v_lshl_add_u32 v{wa}, v{q}, 9, v{wa}")
    a.e(f"v_lshlrev_b32 v{tq}, 3, v{q}")
    a.e(f"v_lshl_add_u32 v{tq}, v{gg}, 10, v{tq}")
    a.e("s_waitcnt lgkmcnt(0)"); a.e("s_barrier")
    for s_ in range(8):
        a.e(f"ds_read_b128 {vr(vB+4*s_,4)}, v{wa} offset:{s_*8192}")
    for s_ in range(1, 8):
        a.e(f"s_waitcnt lgkmcnt({7-s_})")
        for i in range(4):
            a.e(f"v_add_f32 v{vB+i}, v{vB+i}, v{vB+4*s_+i}")
    a.e(f"v_cvt_pk_bf16_f32 v{vACC}, v{vB}, v{vB+1}")
    a.e(f"v_cvt_pk_bf16_f32 v{vACC+1}, v{vB+2}, v{vB+3}")
    a.e(f"buffer_store_dwordx2 {vr(vACC,2)}, v{tq}, {sr(S_OUT)}, 0 offen")
    stamp(47)
    if ST:
        a.e("s_waitcnt vmcnt(0)")
        stamp(48)
        a.e(f"s_lshl_b32 s76, s2, 3"); a.e(f"s_add_u32 s76, s76, s{sW}"); a.e("s_lshl_b32 s76, s76, 8"); a.e(f"s_add_u32 s76, s76, {64<<20}")
        a.e(f"v_lshlrev_b32 v2, 2, v{vLANE}"); a.e("v_add_u32 v2, s76, v2")
        a.e(f"global_store_dword v2, v{vST}, s[18:19]")
    a.label("L_end")
    a.e("s_endpgm")

    hdr = [f"; @launch grid=(256,1,1) block=(512,1,1) lds={LDS_BYTES}",
           '.amdgcn_target "amdgcn-amd-amdhsa--gfx950"', ".text"]
    txt = "\n".join(hdr) + "\n" + a.text()
    txt += f""".section .rodata,"a"
.p2align 6
.amdhsa_kernel {NAME}
  .amdhsa_next_free_vgpr 256
  .amdhsa_next_free_sgpr 96
  .amdhsa_accum_offset 256
  .amdhsa_group_segment_fixed_size 0
  .amdhsa_kernarg_size 64
  .amdhsa_user_sgpr_count 2
  .amdhsa_user_sgpr_kernarg_segment_ptr 1
  .amdhsa_system_sgpr_workgroup_id_x 1
.end_amdhsa_kernel
"""
    return txt

if __name__ == "__main__":
    out = sys.argv[1] if len(sys.argv) > 1 else "k.s"
    cfg = {}
    for kv in sys.argv[2:]:
        k, v = kv.split("=", 1)
        cfg[k] = int(v) if v.lstrip("-").isdigit() else v
    open(out, "w").write(gen(cfg))
```

```python
import sys, math, struct

NAME = "standalone__mha_block_cached__near_ridge_kernel"
C_SCALE = math.log2(math.e) / math.sqrt(128.0)
def f32bits(x): return struct.unpack("<I", struct.pack("<f", x))[0]

class Asm:
    def __init__(self):
        self.L = []; self.lds_seq = 0; self.uid = 0
    def e(self, s): self.L.append("    " + s)
    def label(self, s): self.L.append(s + ":")
    def newlabel(self, p="L"):
        self.uid += 1; return f"{p}_{self.uid}"
    def lds(self, s):
        self.e(s); self.lds_seq += 1; return self.lds_seq
    def wait_lds(self, tok):
        self.e(f"s_waitcnt lgkmcnt({min(self.lds_seq - tok, 15)})")
    def nop(self, n):
        while n > 0:
            k = min(n, 16); self.e(f"s_nop {k-1}"); n -= k
    def text(self): return "\n".join(self.L) + "\n"

def vr(b, n): return f"v[{b}:{b+n-1}]"
def sr(b): return f"s[{b}:{b+3}]"
MF = "v_mfma_f32_16x16x32_bf16"

SLOT = 32768
LDS_BYTES = SLOT * 5
KRING, VRING = 0, 49152
XQ = 4 * SLOT
MA, MB, MSTAT = 0, 65536, 32768
LS = [3 * SLOT, 4 * SLOT, 0, 2 * SLOT, SLOT]
CSL = [0, 1, 0, 1, 0, 1, 2, 3, 4, 0, 1, 2, 3, 4, 0, 1]
CS = [LS[i] for i in CSL]
FLAGLDS = 32768 + 8192

S_K, S_V, S_WQ, S_X, S_O, S_WO, S_OUT, S_DBG, S_OL = 20, 24, 28, 32, 36, 40, 44, 48, 80
sW, sQG, sKH, sB, sH, sC, sNC, sTOFF, sTOFV, sJ = range(52, 62)
sT0, sT1, sT2, sT3 = 64, 65, 66, 67
sW2K, sB2, sQB, sNB, sROT = 68, 69, 70, 71, 73
sW4K, sF, sHR = 78, 79, 84
sW2KV = 85

vLANE = 1
vKOFF = 2
vVOFF = 4
vST = 7
vKA = 8
vONE = 12
vVA = 16
vM = 24
vMT = 26
vT2 = 28
vAL = 30
vQ = 32
vO = 64
vS = [128, 144]
vP = 160
vKF = 168
vVF = 200
vDUM = 232
vDO = 236
vTMP = 240
vNMT = 240
vLA = 248
vSTT = 6
vQACC = 64
vFR = 96
vXLD, vWLD = 12, 14
vXRD = 24
vWA = 26
vACC = 224
AB = [32, 48, 64, 80, 96, 112, 128, 144, 160, 176, 8]
AB = AB + AB[:5]
vB = 192
tAA = 2

def srd(a, s, lo, hi, off_sgpr, nbytes):
    a.e(f"s_add_u32 s{s}, s{lo}, s{off_sgpr}")
    a.e(f"s_addc_u32 s{s+1}, s{hi}, 0")
    a.e(f"s_mov_b32 s{s+2}, {nbytes:#x}")
    a.e(f"s_mov_b32 s{s+3}, 0x20000")

COST = {"v_exp_f32": 8, "v_rcp_f32": 8}
def cost(line):
    op = line.split()[0]
    if op.startswith("buffer_load"): return 16
    if op.startswith("s_"): return 2
    return COST.get(op, 4)

def gen(cfg):
    a = Asm()
    OB = cfg.get("ob", 1); HB = cfg.get("hb", 2); ST = cfg.get("stamp", 0)

    def stamp(idx):
        if not ST: return
        a.e("s_memrealtime s[74:75]"); a.e("s_waitcnt lgkmcnt(0)")
        if idx is not None: a.e(f"v_writelane_b32 v{vST}, s74, {idx}")
        else:
            a.e(f"s_add_u32 s76, s{sJ}, 8"); a.e(f"v_cmp_eq_u32 vcc, s76, v{vLANE}"); a.e(f"v_mov_b32 v{vSTT}, s74"); a.e("s_nop 1")
            a.e(f"v_cndmask_b32 v{vST}, v{vST}, v{vSTT}, vcc")
            a.e("s_memtime s[74:75]"); a.e("s_waitcnt lgkmcnt(0)"); a.e(f"v_mov_b32 v{vSTT}, s74"); a.e("s_nop 1")
            a.e(f"v_cndmask_b32 v0, v0, v{vSTT}, vcc")
    def cstamp(idx):
        if not ST: return
        a.e("s_memtime s[74:75]"); a.e("s_waitcnt lgkmcnt(0)"); a.e(f"v_writelane_b32 v{vST}, s74, {idx}")

    def item_lines(n3, with_k=True, with_v=True):
        L = []
        if with_k:
            L.append([f"s_add_u32 s{sT0}, s{sW2K}, {KRING + n3*16384}", f"s_mov_b32 m0, s{sT0}", "s_nop 0",
                      f"buffer_load_dwordx4 v{vKOFF}, {sr(S_K)}, s{sTOFF} offen nt lds"])
            L.append([f"buffer_load_dwordx4 v{vKOFF+1}, {sr(S_K)}, s{sTOFF} offen offset:1024 nt lds",
                      f"s_add_u32 s{sTOFF}, s{sTOFF}, 16384"])
        if with_v:
            L.append([f"s_add_u32 s{sT0}, s{sW2K}, {VRING + n3*16384}", f"s_mov_b32 m0, s{sT0}", "s_nop 0",
                      f"buffer_load_dwordx4 v{vVOFF}, {sr(S_V)}, s{sTOFV} offen nt lds"])
            L.append([f"buffer_load_dwordx4 v{vVOFF+1}, {sr(S_V)}, s{sTOFV} offen offset:1024 nt lds",
                      f"s_add_u32 s{sTOFV}, s{sTOFV}, 16384"])
        return L
    def emit_groups(G):
        for g in G:
            for l in g: a.e(l)
    def wo_chunk_lines(k, vdo):
        G = [[f"s_add_u32 s{sT0}, s{sW4K}, {CS[k]}", f"s_mov_b32 m0, s{sT0}",
              f"s_lshl_b32 s{sT1}, s{sHR}, 15", f"s_add_u32 s{sT1}, s{sT1}, {k*32768}", (f"s_and_b32 s{sT1}, s{sT1}, 0x7ffff" if not cfg.get("nowo") else f"s_mov_b32 s{sT1}, 0x100000"),
              f"buffer_load_dwordx4 v{vdo}, {sr(S_WO)}, s{sT1} offen lds"]]
        for i in range(1, 4):
            G.append([f"buffer_load_dwordx4 v{vdo+i}, {sr(S_WO)}, s{sT1} offen offset:{i*1024} lds"])
        return G

    a.L += [f".globl {NAME}", ".p2align 8", f".type {NAME},@function"]; a.label(NAME)
    a.e("s_cmp_ge_u32 s2, 256"); a.e("s_cbranch_scc1 L_end")
    a.e("s_load_dwordx16 s[4:19], s[0:1], 0")
    a.e("v_lshrrev_b32 v2, 6, v0")
    a.e(f"v_and_b32 v{vLANE}, 63, v0")
    a.e(f"v_readfirstlane_b32 s{sW}, v2")
    a.e(f"s_and_b32 s{sT0}, s2, 7"); a.e(f"s_lshr_b32 s{sT1}, s2, 3")
    a.e(f"s_and_b32 s{sT2}, s{sT1}, {(1<<HB)-1}")
    a.e(f"s_lshr_b32 s{sT3}, s{sT1}, {HB}")
    a.e(f"s_and_b32 s{sH}, s{sT0}, {(1<<(5-HB))-1}"); a.e(f"s_lshl_b32 s{sH}, s{sH}, {HB}"); a.e(f"s_add_u32 s{sH}, s{sH}, s{sT2}")
    a.e(f"s_lshr_b32 s{sB}, s{sT0}, {5-HB}"); a.e(f"s_lshl_b32 s{sB}, s{sB}, {5-HB}"); a.e(f"s_add_u32 s{sB}, s{sB}, s{sT3}")
    RA, RB = {2: (1, 2), 3: (2, 1), 4: (4, 1), 5: (0, 1)}[HB]
    a.e(f"s_mul_i32 s{sROT}, s{sT3}, {RA}"); a.e(f"s_mul_i32 s{sT2}, s{sT2}, {RB}"); a.e(f"s_add_u32 s{sROT}, s{sROT}, s{sT2}")
    a.e(f"s_and_b32 s{sQB}, s{sT1}, 3")
    a.e(f"s_lshr_b32 s{sT2}, s{sT1}, 2")
    a.e(f"s_and_b32 s{sNB}, s{sT2}, {(1<<(3-OB))-1}")
    a.e(f"s_lshr_b32 s{sT2}, s{sT2}, {3-OB}")
    a.e(f"s_and_b32 s{sB2}, s{sT0}, {(1<<(3-OB))-1}"); a.e(f"s_lshl_b32 s{sB2}, s{sB2}, {OB}"); a.e(f"s_add_u32 s{sB2}, s{sB2}, s{sT2}")
    a.e(f"s_lshr_b32 s{sT3}, s{sT0}, {3-OB}"); a.e(f"s_lshl_b32 s{sT3}, s{sT3}, {3-OB}"); a.e(f"s_add_u32 s{sNB}, s{sNB}, s{sT3}")
    a.e(f"s_lshl_b32 s{sHR}, s{sNB}, 1"); a.e(f"s_add_u32 s{sHR}, s{sHR}, s{sQB}")
    a.e(f"s_lshl_b32 s{sT2}, s{sB2}, 2"); a.e(f"s_add_u32 s{sHR}, s{sHR}, s{sT2}"); a.e(f"s_and_b32 s{sHR}, s{sHR}, {7 if cfg.get('rot8', 1) else 6}")
    a.e(f"s_lshl_b32 s{sHR}, s{sHR}, 1")
    a.e(f"s_and_b32 s{sQG}, s{sW}, 3"); a.e(f"s_lshr_b32 s{sKH}, s{sW}, 2")
    a.e(f"s_lshl_b32 s{sW2K}, s{sW}, 11"); a.e(f"s_lshl_b32 s{sW4K}, s{sW}, 12")
    a.e(f"s_mov_b32 s{sC}, {f32bits(C_SCALE):#x}"); a.e(f"s_mov_b32 s{sNC}, {f32bits(-C_SCALE):#x}")
    g, l15, l8, ch, r, c8, tA, tB = [vTMP + i for i in range(8)]
    a.e(f"v_lshrrev_b32 v{g}, 4, v{vLANE}")
    a.e(f"v_and_b32 v{l15}, 15, v{vLANE}")
    a.e(f"v_lshrrev_b32 v{l8}, 3, v{vLANE}")
    a.e(f"v_and_b32 v{ch}, 7, v{vLANE}")
    a.e(f"s_and_b32 s{sT0}, s{sW}, 1"); a.e(f"s_lshl_b32 s{sT0}, s{sT0}, 3")
    a.e(f"v_lshlrev_b32 v{tA}, 1, v{g}")
    a.e(f"v_or_b32 v{tA}, s{sT0}, v{tA}")
    a.e(f"v_xor_b32 v{tA}, v{tA}, v{l15}")
    a.e(f"v_lshlrev_b32 v{tA}, 4, v{tA}")
    a.e(f"v_lshl_add_u32 v{vWLD}, v{g}, 13, v{tA}")
    a.e(f"s_lshl_b32 s{sT0}, s{sW}, 16")
    a.e(f"v_add_u32 v{vWLD}, s{sT0}, v{vWLD}")
    a.e(f"v_add_u32 v{vWLD+1}, {32768-1024}, v{vWLD}")
    a.e(f"v_lshrrev_b32 v{tA}, 1, v{l8}")
    a.e(f"v_xor_b32 v{tA}, v{tA}, v{ch}")
    a.e(f"v_lshlrev_b32 v{tA}, 4, v{tA}")
    a.e(f"v_lshl_add_u32 v{vXLD}, v{l8}, 10, v{tA}")
    a.e(f"s_lshl_b32 s{sT0}, s{sW}, 14")
    a.e(f"v_add_u32 v{vXLD}, s{sT0}, v{vXLD}")
    a.e(f"v_xor_b32 v{vXLD+1}, 64, v{vXLD}")
    a.e(f"v_add_u32 v{vXLD+1}, {8192-1024}, v{vXLD+1}")
    a.e("s_waitcnt lgkmcnt(0)")
    if ST: a.e(f"v_mov_b32 v{vST}, 0")
    stamp(0)
    a.e(f"s_lshl_b32 s{sT1}, s{sH}, 8")
    srd(a, S_WQ, 10, 11, sT1, 0x400000 - 31 * 256)
    a.e(f"s_lshl_b32 s{sT1}, s{sB}, 17")
    srd(a, S_X, 4, 5, sT1, 0x20000)
    def S_lines(st):
        slot = 1 + st % 4
        return [[f"s_add_u32 s{sT2}, s{sROT}, {st}", f"s_and_b32 s{sT2}, s{sT2}, 7",
                 f"s_add_u32 s{sT3}, s{sW2K}, {slot*SLOT}", f"s_mov_b32 m0, s{sT3}",
                 f"s_lshl_b32 s{sT1}, s{sT2}, 19", f"s_lshl_b32 s{sT2}, s{sT2}, 7",
                 f"buffer_load_dwordx4 v{vXLD}, {sr(S_X)}, s{sT2} offen lds"],
                [f"buffer_load_dwordx4 v{vXLD+1}, {sr(S_X)}, s{sT2} offen offset:1024 lds"],
                [f"s_add_u32 s{sT3}, s{sT3}, 16384", f"s_mov_b32 m0, s{sT3}", "s_nop 0",
                 f"buffer_load_dwordx4 v{vWLD}, {sr(S_WQ)}, s{sT1} offen lds"],
                [f"buffer_load_dwordx4 v{vWLD+1}, {sr(S_WQ)}, s{sT1} offen offset:1024 lds"]]
    for st in range(2): emit_groups(S_lines(st))
    a.e(f"s_lshl_b32 s{sT0}, s{sW}, 3"); a.e(f"s_and_b32 s{sT0}, s{sT0}, 8")
    a.e(f"v_add_u32 v{tA}, s{sT0}, v{g}")
    a.e(f"v_xor_b32 v{tA}, v{tA}, v{l15}")
    a.e(f"v_lshlrev_b32 v{tA}, 4, v{tA}")
    a.e(f"v_lshl_add_u32 v{vKOFF}, v{g}, 8, v{tA}")
    a.e(f"v_add_u32 v{vKOFF}, s{sW2K}, v{vKOFF}")
    a.e(f"v_xor_b32 v{vKOFF+1}, 64, v{vKOFF}")
    a.e(f"v_lshlrev_b32 v{tA}, 1, v{g}")
    a.e(f"v_xor_b32 v{tB}, v{tA}, v{l15}")
    a.e(f"v_lshlrev_b32 v{tB}, 4, v{tB}")
    a.e(f"v_lshl_add_u32 v{vVOFF}, v{g}, 8, v{tB}")
    a.e(f"v_add_u32 v{vVOFF}, s{sW2K}, v{vVOFF}")
    a.e(f"v_xor_b32 v{vVOFF+1}, 128, v{vVOFF}")
    a.e(f"v_xor_b32 v{tB}, v{tA}, v{ch}")
    a.e(f"v_lshlrev_b32 v{tB}, 4, v{tB}")
    a.e(f"v_lshl_add_u32 v{vDO}, v{l8}, 10, v{tB}")
    for i in range(1, 4): a.e(f"v_add_u32 v{vDO+i}, {i*(8192-1024)}, v{vDO}")
    a.e(f"s_lshl_b32 s{sT0}, s{sB}, 5"); a.e(f"s_add_u32 s{sT0}, s{sT0}, s{sH}"); a.e(f"s_lshl_b32 s{sT1}, s{sT0}, 19")
    srd(a, S_K, 6, 7, sT1, 0x80000 if not cfg.get("nokv") else 16384)
    srd(a, S_V, 8, 9, sT1, 0x80000 if not cfg.get("nokv") else 16384)
    a.e(f"s_mov_b32 s{sTOFF}, 0"); a.e(f"s_mov_b32 s{sTOFV}, 0")
    a.e(f"s_lshl_b32 s{sT1}, s{sB}, 21"); a.e(f"s_lshl_b32 s{sT0}, s{sH}, 13"); a.e(f"s_add_u32 s{sT1}, s{sT1}, s{sT0}")
    srd(a, S_O, 18, 19, sT1, 3 * 262144 + 8192)
    a.e(f"s_lshl_b32 s{sT1}, s{sB2}, 21"); a.e(f"s_lshl_b32 s{sT0}, s{sQB}, 18"); a.e(f"s_add_u32 s{sT1}, s{sT1}, s{sT0}")
    a.e(f"s_lshl_b32 s{sT0}, s{sW}, 15"); a.e(f"s_add_u32 s{sT1}, s{sT1}, s{sT0}")
    srd(a, S_OL, 18, 19, sT1, 32768)
    a.e(f"s_lshl_b32 s{sT0}, s{sW}, 19"); a.e(f"s_lshl_b32 s{sT1}, s{sNB}, 7"); a.e(f"s_add_u32 s{sT0}, s{sT0}, s{sT1}")
    srd(a, S_WO, 12, 13, sT0, 511 * 1024 + 128)
    a.e(f"s_lshl_b32 s{sT0}, s{sB2}, 17"); a.e(f"s_lshl_b32 s{sT1}, s{sQB}, 15"); a.e(f"s_add_u32 s{sT0}, s{sT0}, s{sT1}")
    a.e(f"s_lshl_b32 s{sT1}, s{sNB}, 7"); a.e(f"s_add_u32 s{sT0}, s{sT0}, s{sT1}")
    srd(a, S_OUT, 14, 15, sT0, 31 * 1024 + 128)
    a.e(f"s_mov_b32 s{S_DBG}, s16"); a.e(f"s_mov_b32 s{S_DBG+1}, s17"); a.e(f"s_mov_b32 s{S_DBG+2}, 256"); a.e(f"s_mov_b32 s{S_DBG+3}, 0x20000")
    for st in range(2, 4): emit_groups(S_lines(st))
    T1EARLY = cfg.get("t1early", 1)
    emit_groups(item_lines(0, with_v=False))
    if T1EARLY: emit_groups(item_lines(1, with_v=False))
    a.e(f"buffer_load_dword v{vDUM}, v{vVOFF}, {sr(S_V)}, 0 offen nt")

    a.e(f"v_bfe_u32 v{r}, v{vLANE}, 2, 2")
    a.e(f"v_and_b32 v{c8}, 3, v{vLANE}")
    a.e(f"v_lshlrev_b32 v{c8}, 3, v{c8}")
    a.e(f"s_lshl_b32 s{sT1}, s{sKH}, 7")
    kr = ch
    a.e(f"v_and_b32 v{kr}, 1, v{g}")
    a.e(f"v_lshl_add_u32 v{kr}, v{kr}, 2, v{r}")
    a.e(f"v_lshl_add_u32 v{tA}, v{kr}, 5, v{c8}")
    a.e(f"v_xor_b32 v{tA}, s{sT1}, v{tA}")
    a.e(f"v_lshl_add_u32 v{tB}, v{g}, 3, v{r}")
    a.e(f"v_lshl_add_u32 v{tB}, v{tB}, 8, v{tA}")
    a.e(f"v_add_u32 v{tB}, 16384, v{tB}")
    for tt in range(4): a.e(f"v_xor_b32 v{vWA+tt}, {tt<<5}, v{tB}")
    a.e(f"v_lshl_add_u32 v{tB}, v{g}, 2, v{r}")
    a.e(f"v_lshl_add_u32 v{tB}, v{tB}, 8, v{tA}")
    a.e(f"s_lshl_b32 s{sT0}, s{sKH}, 13"); a.e(f"s_add_u32 s{sT2}, s{sT0}, {VRING}")
    a.e(f"v_add_u32 v{tB}, s{sT2}, v{tB}")
    for aa in range(8): a.e(f"v_xor_b32 v{vVA+aa}, {aa<<5}, v{tB}")
    a.e(f"v_lshrrev_b32 v{tA}, 1, v{l15}")
    a.e(f"v_xor_b32 v{tA}, v{tA}, v{g}")
    a.e(f"v_lshlrev_b32 v{tA}, 4, v{tA}")
    a.e(f"v_lshl_add_u32 v{tA}, v{l15}, 7, v{tA}")
    a.e(f"s_lshl_b32 s{sT2}, s{sQG}, 12")
    a.e(f"v_add_u32 v{vXRD}, s{sT2}, v{tA}")
    a.e(f"v_xor_b32 v{vXRD+1}, 64, v{vXRD}")
    kq = l8
    a.e(f"v_xor_b32 v{kq}, v{g}, v{l15}")
    a.e(f"v_lshlrev_b32 v{kq}, 4, v{kq}")
    a.e(f"v_lshl_add_u32 v{kq}, v{l15}, 8, v{kq}")
    a.e(f"v_add_u32 v{tA}, s{sT0}, v{kq}")
    for ds in range(4): a.e(f"v_xor_b32 v{vKA+ds}, {ds<<6}, v{tA}")
    stamp(1)

    order = ["S0", "S1", "S2", "S3", "T0", "S4", "S5", "S6", "S7", "T1", "T2", "N0"]
    cnt = {n: 4 for n in order}
    cnt["N0"] = 0
    cnt["T0"] = (4 if T1EARLY else 2) + 1
    cnt["T1"] = 0 if T1EARLY else 2
    cur_hi = [0]
    def frag_regs(st, ks):
        b = vFR + (st % 2) * 48 + ks * 24
        return [b, b + 4], [b + 8 + 4 * tt for tt in range(4)]
    def read_ops(st):
        base = ((1 + st % 4) * SLOT) & 0xffff
        ops = []
        for ks in range(2):
            xs, ws_ = frag_regs(st, ks)
            for qt in range(2):
                ops.append(f"ds_read_b128 {vr(xs[qt],4)}, v{vXRD+ks} offset:{base+qt*2048}")
            for tt in range(4):
                ops.append(f"ds_read_b64_tr_b16 {vr(ws_[tt],2)}, v{vWA+tt} offset:{base+ks*8192}")
                ops.append(f"ds_read_b64_tr_b16 {vr(ws_[tt]+2,2)}, v{vWA+tt} offset:{base+ks*8192+1024}")
        return ops
    def set_hi(st):
        hi_add = ((1 + st % 4) * SLOT) & ~0xffff
        if hi_add != cur_hi[0]:
            a.e(f"s_mov_b32 s{sT0}, {hi_add - cur_hi[0]}")
            for rr in [vXRD, vXRD + 1] + [vWA + i for i in range(4)]:
                a.e(f"v_add_u32 v{rr}, s{sT0}, v{rr}")
            cur_hi[0] = hi_add
    def sync_step(st):
        issued = 5 + max(st - 1, 0)
        idx = order.index(f"S{st}")
        after = sum(cnt[n] for n in order[idx + 1:issued])
        a.e(f"s_waitcnt vmcnt({after}) lgkmcnt(0)")
        a.e("s_barrier")
        if st == 0: stamp(2); cstamp(52)
        if st == 4: stamp(3)
    def next_groups(st):
        n = order[4 + st]
        if n[0] == "S": return S_lines(int(n[1]))
        if n == "T1" and not T1EARLY: return item_lines(1, with_v=False)
        if n == "T2": return item_lines(2)
        return []
    sync_step(0)
    ops = read_ops(0)
    for o in ops[:15]: a.e(o)
    a.e("s_waitcnt lgkmcnt(8)")
    for o in ops[15:]: a.e(o)
    for st in range(8):
        ops = []; dma = []
        if st < 7:
            set_hi(st + 1)
            sync_step(st + 1)
            ops = read_ops(st + 1)
            dma = next_groups(st + 1)
        else:
            a.e("s_waitcnt lgkmcnt(0)")
            a.e("s_barrier")
        m = 0
        for ks in range(2):
            xs, ws_ = frag_regs(st, ks)
            for tt in range(4):
                for qt in range(2):
                    acc = vQACC + (tt * 2 + qt) * 4
                    cin = "0" if (st == 0 and ks == 0) else vr(acc, 4)
                    if not (cfg.get("qskip") and st > 0): a.e(f"{MF} {vr(acc,4)}, {vr(ws_[tt],4)}, {vr(xs[qt],4)}, {cin}")
                    if cfg.get("qslow"): a.nop(cfg["qslow"])
                    if ops and m >= 6: a.e("s_waitcnt lgkmcnt(10)")
                    nrd = 2 if m < 8 else 1
                    for o in ops[:nrd]: a.e(o)
                    ops = ops[nrd:]
                    if dma and m >= 2 and m % 2 == 0:
                        for l in dma.pop(0): a.e(l)
                    if st == 7 and m < 8:
                        for i in range(4): a.e(f"v_mov_b32 v{vO+32+4*m+i}, 0")
                    m += 1
        assert not ops and not dma, (len(ops), len(dma))
    stamp(4); cstamp(53)
    qw = tA
    a.e(f"v_lshrrev_b32 v{qw}, 1, v{g}")
    a.e(f"v_xor_b32 v{qw}, v{qw}, v{l15}")
    a.e(f"v_lshlrev_b32 v{qw}, 4, v{qw}")
    a.e(f"v_lshl_add_u32 v{qw}, v{l15}, 8, v{qw}")
    a.e(f"v_and_b32 v{tB}, 1, v{g}")
    a.e(f"v_lshl_add_u32 v{qw}, v{tB}, 3, v{qw}")
    a.e(f"s_lshl_b32 s{sT0}, s{sQG}, 13"); a.e(f"s_add_u32 s{sT0}, s{sT0}, {XQ}")
    a.e(f"s_lshl_b32 s{sT1}, s{sKH}, 7")
    a.e(f"v_xor_b32 v{qw}, s{sT1}, v{qw}")
    a.e(f"v_add_u32 v{qw}, s{sT0}, v{qw}")
    a.e(f"v_add_u32 v{kq}, s{sT0}, v{kq}")
    for tt in range(4):
        a.e(f"v_xor_b32 v{tB}, {tt<<5}, v{qw}")
        for qt in range(2):
            acc = vQACC + (tt * 2 + qt) * 4
            d = vQ + (tt * 2 + qt) * 2
            for i in range(4): a.e(f"v_mul_f32 v{acc+i}, s{sC}, v{acc+i}")
            a.e(f"v_cvt_pk_bf16_f32 v{d}, v{acc}, v{acc+1}")
            a.e(f"v_cvt_pk_bf16_f32 v{d+1}, v{acc+2}, v{acc+3}")
            a.e(f"ds_write_b64 v{tB}, {vr(d,2)} offset:{qt*4096}")
    for i in range(4): a.e(f"v_mov_b32 v{vONE+i}, 0x3f803f80")
    for i in range(32): a.e(f"v_mov_b32 v{vO+i}, 0")
    a.e(f"s_mov_b32 s{sJ}, 0")
    for ds in range(1, 4): a.e(f"v_xor_b32 v{vTMP+8+ds}, {ds<<6}, v{kq}")
    a.e(f"s_waitcnt vmcnt({cnt['T1'] + 4}) lgkmcnt(0)")
    a.e("s_barrier")
    for qt in range(2):
        for ds in range(4):
            ad = kq if ds == 0 else vTMP + 8 + ds
            a.e(f"ds_read_b128 {vr(vQ+(qt*4+ds)*4,4)}, v{ad} offset:{qt*4096}")
    a.e("s_waitcnt lgkmcnt(4)")
    for kt in range(2):
        for ds in range(4):
            a.e(f"ds_read_b128 {vr(vKF+(kt*4+ds)*4,4)}, v{vKA+ds} offset:{KRING + kt*4096}")
    for i in range(8): a.e(f"v_mov_b32 v{vLA+i}, 0")
    stamp(6); cstamp(50)

    tagpar = {}
    def els_(): return [(kt * 2 + qt) * 4 + rr for qt in range(2) for kt in range(2) for rr in range(4)]
    def first_ref():
        for qt in range(2):
            xgroup("v_max_f32", vMT + qt, vT2)
            a.e(f"v_mov_b32 v{vM+qt}, v{vMT+qt}")
            for i in range(4): a.e(f"v_sub_f32 v{vNMT+4*qt+i}, 0, v{vMT+qt}")
            for k_ in range(8):
                e_ = vS[0] + els_()[8 * qt + k_]
                a.e(f"v_sub_f32 v{e_}, v{e_}, v{vMT+qt}")
    def iteration(i6, do_qk, do_pv, do_kr, wait, issue, tag, extra=None, post=None):
        par = i6 % 2
        slot = ((i6 + 1) % 3) * 16384
        Sn, Sp = vS[par], vS[1 - par]
        a.lds_seq = 0
        a.e(f"s_waitcnt vmcnt({wait}) lgkmcnt(0)")
        a.e("s_barrier")
        if ST >= 2: stamp(None)
        if ST == 1 and tag in ("p29", "p32"): cstamp(54 if tag == "p29" else 55)
        G = list(issue) if issue else []
        els = [(kt * 2 + qt) * 4 + rr for qt in range(2) for kt in range(2) for rr in range(4)]
        F1 = []
        if do_pv:
            for k_ in range(16):
                F1.append(f"v_exp_f32 v{Sp+els[k_]}, v{Sp+els[k_]}")
                if k_ >= 2 and k_ % 2 == 0:
                    p = k_ // 2 - 1
                    F1.append(f"v_cvt_pk_bf16_f32 v{vP+p}, v{Sp+els[2*p]}, v{Sp+els[2*p+1]}")
            F1.append("s_nop 0")
            F1.append(f"v_cvt_pk_bf16_f32 v{vP+7}, v{Sp+els[14]}, v{Sp+els[15]}")
        vtok = {}
        def vread(h):
            aa, sec = h // 2, h % 2
            tk = a.lds(f"ds_read_b64_tr_b16 {vr(vVF+4*aa+2*sec,2)}, v{vVA+aa} offset:{slot+sec*4096}")
            if sec: vtok[aa] = tk
        def drain(F, budget):
            used = 0
            while F and used < budget:
                l = F.pop(0); a.e(l); used += cost(l)
        if do_qk:
            m = 0
            for kt in range(2):
                for qt in range(2):
                    acc = Sn + (kt * 2 + qt) * 4
                    for ds in range(4):
                        cin = ("0" if tag == "i0" else vr(vNMT + 4 * qt, 4)) if ds == 0 else vr(acc, 4)
                        a.e(f"{MF} {vr(acc,4)}, {vr(vKF+(kt*4+ds)*4,4)}, {vr(vQ+(qt*4+ds)*4,4)}, {cin}")
                        if G and m % 2 == 0:
                            for l in G.pop(0): a.e(l)
                        if do_pv:
                            if m == 15: a.e("s_waitcnt lgkmcnt(14)")
                            vread(m)
                            drain(F1, cfg.get("gap1", 8))
                        m += 1
        else:
            for h in range(15): vread(h)
            emit_groups(G); G = []
            drain(F1, 64)
            a.e("s_waitcnt lgkmcnt(14)")
            vread(15)
        emit_groups(G)
        if extra: extra()
        drain(F1, 10000)
        F2 = []
        F3 = []
        if do_qk:
            for qt in range(2):
                e_ = [Sn + els[8 * qt + k_] for k_ in range(8)]
                F3.append(f"v_max3_f32 v{vMT+qt}, v{e_[0]}, v{e_[1]}, v{e_[2]}")
                F3.append(f"v_max3_f32 v{vMT+qt}, v{e_[3]}, v{e_[4]}, v{vMT+qt}")
                F3.append(f"v_max3_f32 v{vMT+qt}, v{e_[5]}, v{e_[6]}, v{vMT+qt}")
                F3.append(f"v_max_f32 v{vMT+qt}, v{e_[7]}, v{vMT+qt}")
            F3.append(f"v_max_f32 v{vAL}, v{vMT}, v{vMT+1}")
            F3.append(f"v_cmp_lt_f32 vcc, 0x41000000, v{vAL}")
        def kread(x):
            kt, ds = x // 4, x % 4
            a.lds(f"ds_read_b128 {vr(vKF+x*4,4)}, v{vKA+ds} offset:{KRING+slot+kt*4096}")
        if do_pv:
            a.nop(2)
            for qt in range(2):
                a.e(f"{MF} {vr(vLA+4*qt,4)}, {vr(vONE,4)}, {vr(vP+4*qt,4)}, {vr(vLA+4*qt,4)}")
            m = 0
            for aa in range(8):
                a.wait_lds(vtok[aa])
                for qt in range(2):
                    acc = vO + (aa * 2 + qt) * 4
                    a.e(f"{MF} {vr(acc,4)}, {vr(vVF+4*aa,4)}, {vr(vP+4*qt,4)}, {vr(acc,4)}")
                    if do_kr and 2 <= m < 10: kread(m - 2)
                    if 4 <= m < 15: drain(F3, cfg.get("gap2", 4))
                    m += 1
        else:
            if do_kr:
                for x in range(8): kread(x)
            a.nop(4)
        drain(F3, 10000)
        if post: post()
        a.e(f"s_add_u32 s{sJ}, s{sJ}, 1")
        if tag == "i0":
            first_ref()
        elif do_qk:
            a.e(f"s_cbranch_vccnz L_resc_{tag}")
            a.label(f"L_back_{tag}")
            tagpar[tag] = par
    def xgroup(op, reg, tmp):
        a.e(f"v_mov_b32 v{tmp}, v{reg}")
        a.nop(2)
        a.e(f"v_permlane32_swap_b32 v{reg}, v{tmp}")
        a.e(f"{op} v{reg}, v{reg}, v{tmp}")
        a.e(f"v_mov_b32 v{tmp}, v{reg}")
        a.nop(2)
        a.e(f"v_permlane16_swap_b32 v{reg}, v{tmp}")
        a.e(f"{op} v{reg}, v{reg}, v{tmp}")
    def rescale_code(par):
        a.label(f"L_resc{par}")
        for qt in range(2):
            xgroup("v_max_f32", vMT + qt, vT2)
            a.e(f"v_max_f32 v{vMT+qt}, 0, v{vMT+qt}")
            a.e(f"v_exp_f32 v{vAL+qt}, -v{vMT+qt}")
            a.e(f"v_add_f32 v{vM+qt}, v{vM+qt}, v{vMT+qt}")
            for i in range(4): a.e(f"v_sub_f32 v{vNMT+4*qt+i}, 0, v{vM+qt}")
            for k_ in range(8):
                e_ = vS[par] + els_()[8 * qt + k_]
                a.e(f"v_sub_f32 v{e_}, v{e_}, v{vMT+qt}")
        for qt in range(2):
            for i in range(4): a.e(f"v_mul_f32 v{vLA+4*qt+i}, v{vLA+4*qt+i}, v{vAL+qt}")
        for aa in range(8):
            for qt in range(2):
                for i in range(4):
                    a.e(f"v_mul_f32 v{vO+(aa*2+qt)*4+i}, v{vO+(aa*2+qt)*4+i}, v{vAL+qt}")
        a.e("s_setpc_b64 s[88:89]")
    def rescale_stub(tag):
        a.label(f"L_resc_{tag}")
        a.e("s_getpc_b64 s[88:89]")
        a.e(f"s_add_u32 s88, s88, L_back_{tag}-L_resc_{tag}-4")
        a.e("s_addc_u32 s89, s89, -1")
        a.e(f"s_branch L_resc{tagpar[tag]}")
    TCH = cfg.get("touch", 1)
    def touches():
        ta = vT2
        a.e(f"s_lshl_b32 s{sT0}, s{sB}, 21"); a.e(f"s_add_u32 s{sT0}, s{sT0}, {(1<<20)+65536}")
        a.e(f"v_mov_b32 v{ta}, s{sT0}")
        a.e(f"s_lshl_b32 s{sT0}, s{sB2}, 21"); a.e(f"s_add_u32 s{sT0}, s{sT0}, {(1<<20)+65536}")
        a.e(f"v_mov_b32 v{ta+1}, s{sT0}")
        a.e(f"v_mov_b32 v{ta+2}, 0")
        a.e(f"global_load_dword v{vDUM}, v{ta}, s[18:19]")
        a.e(f"global_load_dword v{vDUM}, v{ta+1}, s[18:19]")
        a.e(f"buffer_load_dword v{vDUM}, v{ta+2}, {sr(S_OUT)}, 0 offen")
        a.e(f"buffer_load_dword v{vDUM}, v{ta+2}, {sr(S_DBG)}, 0 offen sc1")
    PF = cfg.get("pf", -1)
    def wo_prefetch():
        lb = a.newlabel("L_pf")
        a.e(f"s_cmp_lg_u32 s{sJ}, {PF}"); a.e(f"s_cbranch_scc1 {lb}")
        ta = vT2
        nl = 1 << (3 - OB)
        rows_per_wave = 64 // nl
        a.e(f"s_lshr_b32 s{sT0}, s2, 3"); a.e(f"s_lshl_b32 s{sT0}, s{sT0}, 3"); a.e(f"s_add_u32 s{sT0}, s{sT0}, s{sW}")
        for rep in range(nl * 4096 // (64 * 256)):
            pass
        nrep = 4096 * nl // (256 * 64)
        a.e(f"s_mul_i32 s{sT0}, s{sT0}, {rows_per_wave * nrep * 1024}")
        a.e(f"s_lshr_b32 s{sT1}, s{sNB}, {3-OB}"); a.e(f"s_lshl_b32 s{sT1}, s{sT1}, {3-OB+7}")
        a.e(f"s_add_u32 s{sT0}, s{sT0}, s{sT1}")
        a.e(f"v_lshrrev_b32 v{ta}, {3-OB}, v{vLANE}")
        a.e(f"v_and_b32 v{ta+1}, {nl-1}, v{vLANE}")
        a.e(f"v_lshlrev_b32 v{ta+1}, 7, v{ta+1}")
        a.e(f"v_lshl_add_u32 v{ta}, v{ta}, 10, v{ta+1}")
        a.e(f"v_add_u32 v{ta}, s{sT0}, v{ta}")
        for rep in range(nrep):
            a.e(f"global_load_dword v{vDUM}, v{ta}, s[12:13]")
            if rep + 1 < nrep: a.e(f"v_add_u32 v{ta}, {rows_per_wave*1024}, v{ta}")
        a.label(lb)
    cur = [0]
    def aaddr_setup():
        tAT = vT2
        a.e(f"v_lshrrev_b32 v{tAT}, 4, v{vLANE}")
        a.e(f"v_bfe_u32 v{tAT+1}, v{vLANE}, 2, 2")
        a.e(f"v_lshl_add_u32 v{tAT+2}, v{tAT}, 2, v{tAT+1}")
        a.e(f"v_bfe_u32 v{tAT+3}, v{tAT+2}, 1, 2")
        a.e(f"v_and_b32 v{tAT}, 3, v{vLANE}")
        a.e(f"v_lshlrev_b32 v{tAT}, 3, v{tAT}")
        a.e(f"v_lshl_add_u32 v{tAT}, v{tAT+3}, 5, v{tAT}")
        a.e(f"v_lshl_add_u32 v{tAT}, v{tAT+2}, 7, v{tAT}")
        a.e(f"v_add_u32 v{tAT}, s{sW4K}, v{tAT}")
        for nt in range(4): a.e(f"v_xor_b32 v{tAA+nt}, {nt<<5}, v{tAT}")
    def a_reads(k):
        so = CS[k]
        win, base = so & ~0xffff, so & 0xffff
        if win != cur[0]:
            a.e(f"s_mov_b32 s{sT0}, {win - cur[0]}")
            for nt in range(4): a.e(f"v_add_u32 v{tAA+nt}, s{sT0}, v{tAA+nt}")
            cur[0] = win
        fb = AB[k]
        for nt in range(4):
            a.e(f"ds_read_b64_tr_b16 {vr(fb+4*nt,2)}, v{tAA+nt} offset:{base}")
            a.e(f"ds_read_b64_tr_b16 {vr(fb+4*nt+2,2)}, v{tAA+nt} offset:{base+2048}")
    tags = []
    iteration(0, True, False, True, 4, item_lines(0), "i0", extra=(touches if TCH == 2 else None))
    a.L.append(".p2align 6")
    a.label("L_loop")
    for u in range(6):
        i6 = 1 + u
        iteration(i6, True, True, True, 4, item_lines(i6 % 3), f"l{u}", extra=(wo_prefetch if (PF > 0 and u == (PF - 1) % 6) else None))
        tags.append(f"l{u}")
    a.e(f"s_cmp_lt_u32 s{sJ}, {cfg.get('short', 25)}"); a.e("s_cbranch_scc1 L_loop")
    E0 = cfg.get("e0", 27)
    icnt = lambda n: 0 if n > 33 else (2 if n > 31 else 4)
    extra_ops = {E0: 8 if TCH == 1 else 4, E0 + 1: 4}
    for i in range(25, 33):
        w_ = icnt(i + 2) + sum(extra_ops.get(j, 0) for j in (i - 2, i - 1))
        iss = item_lines(i % 3, with_k=(i + 3 < 32)) if i + 3 <= 33 else None
        ex = None; post = None
        if i == E0: ex = lambda: (emit_groups(wo_chunk_lines(0, vDO)), touches() if TCH == 1 else None)
        if i == E0 + 1: ex = lambda: emit_groups(wo_chunk_lines(1, vDO))
        if i == 31: post = lambda: (aaddr_setup(), a_reads(0), a.e("s_waitcnt lgkmcnt(4)"), a_reads(1))
        if i == 32: iss = wo_chunk_lines(2, vDO) + wo_chunk_lines(3, vDO)
        iteration(i, i < 32, True, i < 31, w_, iss, f"p{i}", extra=ex, post=post)
        if i < 32: tags.append(f"p{i}")
    a.e("s_branch L_loopdone")
    for tag in tags: rescale_stub(tag)
    rescale_code(0); rescale_code(1)
    a.label("L_loopdone")
    stamp(41); cstamp(51)
    if ST >= 2:
        a.e(f"s_lshl_b32 s76, s2, 3"); a.e(f"s_add_u32 s76, s76, s{sW}"); a.e("s_lshl_b32 s76, s76, 8"); a.e(f"s_add_u32 s76, s76, {65<<20}")
        a.e(f"v_lshlrev_b32 v{vSTT}, 2, v{vLANE}"); a.e(f"v_add_u32 v{vSTT}, s76, v{vSTT}")
        a.e(f"global_store_dword v{vSTT}, v0, s[18:19]"); a.e("s_waitcnt vmcnt(0)")

    if cfg.get("notail"): a.e("s_endpgm")
    ea = 128; mp = 132; mx = 136; st4 = 140
    a.e(f"v_lshlrev_b32 v{ea}, 4, v{vLANE}")
    a.e(f"s_lshl_b32 s{sT0}, s{sQG}, 13")
    a.e(f"v_add_u32 v{ea+1}, s{sT0}, v{ea}")
    a.e(f"s_cmp_eq_u32 s{sKH}, 0")
    a.e(f"s_cselect_b32 s{sT0}, {MA}, {MB}")
    a.e(f"s_cselect_b32 s{sT1}, {MB}, {MA}")
    a.e(f"v_add_u32 v{ea+2}, s{sT1}, v{ea+1}")
    a.e(f"v_add_u32 v{ea+1}, s{sT0}, v{ea+1}")
    a.e(f"s_lshl_b32 s{sT0}, s{sW}, 10"); a.e(f"s_add_u32 s{sT0}, s{sT0}, {MSTAT}")
    a.e(f"v_add_u32 v{ea+3}, s{sT0}, v{ea}")
    for i in range(8):
        a.e(f"ds_write_b128 v{ea+1}, {vr(vO+32+4*i,4)} offset:{i*1024}")
    for qt in range(2):
        a.e(f"v_mov_b32 v{st4+qt}, v{vM+qt}"); a.e(f"v_mov_b32 v{st4+2+qt}, v{vLA+4*qt}")
    a.e(f"ds_write_b128 v{ea+3}, {vr(st4,4)}")
    a.e(f"v_xor_b32 v{ea+3}, 4096, v{ea+3}")
    a.e("s_waitcnt lgkmcnt(0)"); a.e("s_barrier")
    a.e(f"ds_read_b128 {vr(mp,4)}, v{ea+3}")
    for i in range(8):
        a.e(f"ds_read_b128 {vr(vKF+4*i,4)}, v{ea+2} offset:{i*1024}")
    a.e(f"s_lshl_b32 s{sT0}, s{sQG}, 18"); a.e(f"s_lshl_b32 s{sT1}, s{sKH}, 12"); a.e(f"s_add_u32 s{sT2}, s{sT0}, s{sT1}")
    a.e("s_waitcnt lgkmcnt(8)")
    fs, fp = vT2, vAL
    for qt in range(2):
        a.e(f"v_max_f32 v{mx+qt}, v{vM+qt}, v{mp+qt}")
        a.e(f"v_sub_f32 v{fs+qt}, v{vM+qt}, v{mx+qt}")
        a.e(f"v_sub_f32 v{fp+qt}, v{mp+qt}, v{mx+qt}")
        a.e(f"v_exp_f32 v{fs+qt}, v{fs+qt}")
        a.e(f"v_exp_f32 v{fp+qt}, v{fp+qt}")
    for qt in range(2):
        a.e(f"v_mul_f32 v{mx+qt}, v{st4+2+qt}, v{fs+qt}")
        a.e(f"v_fma_f32 v{mx+qt}, v{mp+2+qt}, v{fp+qt}, v{mx+qt}")
    for qt in range(2): a.e(f"v_rcp_f32 v{mx+qt}, v{mx+qt}")
    a.nop(1)
    for qt in range(2):
        a.e(f"v_mul_f32 v{fs+qt}, v{fs+qt}, v{mx+qt}")
        a.e(f"v_mul_f32 v{fp+qt}, v{fp+qt}, v{mx+qt}")
    for aa in range(4):
        for qt in range(2):
            for i in range(4):
                a.e(f"v_mul_f32 v{vO+(aa*2+qt)*4+i}, v{vO+(aa*2+qt)*4+i}, v{fs+qt}")
    for mm in range(2):
        a.e(f"s_waitcnt lgkmcnt({4-4*mm})")
        for x in range(16 * mm, 16 * mm + 16):
            qt = (x // 4) % 2
            a.e(f"v_fma_f32 v{vO+x}, v{vKF+x}, v{fp+qt}, v{vO+x}")
        for qt in range(2):
            f = 2 * mm + qt
            for half in range(2):
                src = vO + ((2 * mm + half) * 2 + qt) * 4
                a.e(f"v_cvt_pk_bf16_f32 v{vVF+4*f+2*half}, v{src}, v{src+1}")
                a.e(f"v_cvt_pk_bf16_f32 v{vVF+4*f+2*half+1}, v{src+2}, v{src+3}")
            a.e(f"buffer_store_dwordx4 {vr(vVF+4*f,4)}, v{ea}, {sr(S_O)}, s{sT2} offen offset:{f*1024} sc1")
    stamp(42)
    tDO, tBO = 24, 6
    for i in range(4): a.e(f"v_mov_b32 v{tDO+i}, v{vDO+i}")
    vFD, vFC, vFG = 28, 29, 31
    a.e(f"v_lshlrev_b32 v{tBO}, 4, v{vLANE}")
    a.e(f"s_lshl_b32 s{sT0}, s{sB2}, 5"); a.e(f"s_lshl_b32 s{sT1}, s{sW}, 2"); a.e(f"s_add_u32 s{sT0}, s{sT0}, s{sT1}")
    a.e(f"v_mov_b32 v{vFG}, s{sT0}")
    a.e("s_waitcnt vmcnt(8)")
    a_reads(2)
    a.e("s_waitcnt lgkmcnt(0)")
    emit_groups(wo_chunk_lines(4, tDO))
    a.e("s_waitcnt vmcnt(8)")
    a_reads(3)
    a.e("s_waitcnt lgkmcnt(0)")
    emit_groups(wo_chunk_lines(5, tDO))
    a.e("s_waitcnt vmcnt(8)")
    a.e("s_barrier")
    a.e(f"s_cmp_lg_u32 s{sW}, 0"); a.e("s_cbranch_scc1 L_noflag")
    a.e(f"s_lshl_b32 s{sT0}, s{sB}, 5"); a.e(f"s_add_u32 s{sT0}, s{sT0}, s{sH}")
    a.e(f"v_mov_b32 v{vFD}, 1"); a.e(f"v_mov_b32 v{vFC}, s{sT0}")
    a.e("s_mov_b64 exec, 1")
    a.e(f"buffer_store_byte v{vFD}, v{vFC}, {sr(S_DBG)}, 0 offen sc1")
    a.e("s_mov_b64 exec, -1")
    a.label("L_noflag")
    stamp(43); cstamp(56)
    for c_ in (6, 7, 8): emit_groups(wo_chunk_lines(c_, tDO))
    for c_ in range(4, 11):
        a.e("s_waitcnt vmcnt(16)")
        a_reads(c_)
        a.e("s_waitcnt lgkmcnt(0)")
        emit_groups(wo_chunk_lines(c_ + 5, tDO))
    stamp(44); cstamp(57)
    def poll():
        a.e(f"buffer_load_dword v{vFD}, v{vFG}, {sr(S_DBG)}, 0 offen sc1")
        a.e("s_waitcnt vmcnt(0)")
        a.e(f"v_readfirstlane_b32 s{sF}, v{vFD}")
        a.e("s_nop 1")
    def wait_pair(k):
        a.e(f"s_add_u32 s{sT1}, s{sHR}, {k}"); a.e(f"s_and_b32 s{sT1}, s{sT1}, 15")
        a.e(f"s_lshr_b32 s{sT2}, s{sT1}, 2"); a.e(f"s_lshl_b32 s{sT2}, s{sT2}, 3")
        a.e(f"s_lshl_b32 s{sT1}, s{sT1}, 11")
        a.label(f"L_p{k}")
        a.e(f"s_lshr_b32 s{sT0}, s{sF}, s{sT2}"); a.e(f"s_and_b32 s{sT0}, s{sT0}, 0xff")
        a.e(f"s_cbranch_scc1 L_go{k}")
        a.e(f"s_sleep {cfg.get('psleep', 4)}")
        poll()
        a.e(f"s_branch L_p{k}")
        a.label(f"L_go{k}")
    def b_load(fr):
        a.e(f"buffer_load_dwordx4 {vr(vB+4*(fr%8),4)}, v{tBO}, {sr(S_OL)}, s{sT1} offen offset:{(fr%4)*1024} sc1")
    poll()
    for k in (0, 2):
        wait_pair(k)
        for fr in range(2 * k, 2 * k + 4): b_load(fr)
    stamp(45)
    for k in range(16):
        a.e(f"s_waitcnt vmcnt({min(6, 30 - 2*k)})" + (" lgkmcnt(0)" if k == 11 else ""))
        fb = AB[k]
        for nt in range(4):
            for qt in range(2):
                acc = vACC + (nt * 2 + qt) * 4
                cin = "0" if k == 0 else vr(acc, 4)
                a.e(f"{MF} {vr(acc,4)}, {vr(fb+4*nt,4)}, {vr(vB+4*((2*k+qt)%8),4)}, {cin}")
        if k + 4 <= 15:
            if k % 2 == 0: wait_pair(k + 4)
            b_load(2 * k + 8); b_load(2 * k + 9)
        if k < 5:
            if k >= 1: a.e("s_waitcnt lgkmcnt(4)")
            a_reads(11 + k)
    stamp(46); cstamp(58)
    a.e("s_barrier")
    q, wa, tq, gg = 2, 3, 4, 5
    a.e(f"v_lshrrev_b32 v{gg}, 4, v{vLANE}")
    a.e(f"v_and_b32 v{q}, 15, v{vLANE}")
    a.e(f"v_xor_b32 v{wa}, v{q}, v{gg}")
    a.e(f"v_lshlrev_b32 v{wa}, 4, v{wa}")
    a.e(f"v_lshl_add_u32 v{wa}, v{gg}, 9, v{wa}")
    a.e(f"s_lshl_b32 s{sT0}, s{sW}, 13")
    a.e(f"v_add_u32 v{wa}, s{sT0}, v{wa}")
    a.nop(2)
    for nt in range(4):
        a.e(f"v_xor_b32 v{tq}, {nt*64}, v{wa}")
        for qt in range(2):
            a.e(f"ds_write_b128 v{tq}, {vr(vACC+(nt*2+qt)*4,4)} offset:{nt*2048+qt*256}")
    a.e(f"s_lshl_b32 s{sT0}, s{sW}, 2")
    a.e(f"v_add_u32 v{gg}, s{sT0}, v{gg}")
    a.e(f"v_xor_b32 v{wa}, v{gg}, v{q}")
    a.e(f"v_lshlrev_b32 v{wa}, 4, v{wa}")
    a.e(f"v_lshl_add_u32 v{wa}, v{q}, 9, v{wa}")
    a.e(f"v_lshlrev_b32 v{tq}, 3, v{q}")
    a.e(f"v_lshl_add_u32 v{tq}, v{gg}, 10, v{tq}")
    a.e("s_waitcnt lgkmcnt(0)"); a.e("s_barrier")
    for s_ in range(8):
        a.e(f"ds_read_b128 {vr(vB+4*s_,4)}, v{wa} offset:{s_*8192}")
    for s_ in range(1, 8):
        a.e(f"s_waitcnt lgkmcnt({7-s_})")
        for i in range(4):
            a.e(f"v_add_f32 v{vB+i}, v{vB+i}, v{vB+4*s_+i}")
    a.e(f"v_cvt_pk_bf16_f32 v{vACC}, v{vB}, v{vB+1}")
    a.e(f"v_cvt_pk_bf16_f32 v{vACC+1}, v{vB+2}, v{vB+3}")
    a.e(f"buffer_store_dwordx2 {vr(vACC,2)}, v{tq}, {sr(S_OUT)}, 0 offen")
    stamp(47)
    if ST:
        a.e("s_waitcnt vmcnt(0)")
        stamp(48)
        a.e(f"s_lshl_b32 s76, s2, 3"); a.e(f"s_add_u32 s76, s76, s{sW}"); a.e("s_lshl_b32 s76, s76, 8"); a.e(f"s_add_u32 s76, s76, {64<<20}")
        a.e(f"v_lshlrev_b32 v2, 2, v{vLANE}"); a.e("v_add_u32 v2, s76, v2")
        a.e(f"global_store_dword v2, v{vST}, s[18:19]")
    a.label("L_end")
    a.e("s_endpgm")

    hdr = [f"; @launch grid=(256,1,1) block=(512,1,1) lds={LDS_BYTES}",
           '.amdgcn_target "amdgcn-amd-amdhsa--gfx950"', ".text"]
    txt = "\n".join(hdr) + "\n" + a.text()
    txt += f""".section .rodata,"a"
.p2align 6
.amdhsa_kernel {NAME}
  .amdhsa_next_free_vgpr 256
  .amdhsa_next_free_sgpr 96
  .amdhsa_accum_offset 256
  .amdhsa_group_segment_fixed_size 0
  .amdhsa_kernarg_size 64
  .amdhsa_user_sgpr_count 2
  .amdhsa_user_sgpr_kernarg_segment_ptr 1
  .amdhsa_system_sgpr_workgroup_id_x 1
.end_amdhsa_kernel
"""
    return txt

if __name__ == "__main__":
    out = sys.argv[1] if len(sys.argv) > 1 else "k.s"
    cfg = {}
    for kv in sys.argv[2:]:
        k, v = kv.split("=", 1)
        cfg[k] = int(v) if v.lstrip("-").isdigit() else v
    open(out, "w").write(gen(cfg))
```

```python
import sys, math, struct

NAME = "standalone__mha_block_cached__near_ridge_kernel"
C_SCALE = math.log2(math.e) / math.sqrt(128.0)
def f32bits(x): return struct.unpack("<I", struct.pack("<f", x))[0]

class Asm:
    def __init__(self):
        self.L = []; self.lds_seq = 0; self.uid = 0
    def e(self, s): self.L.append("    " + s)
    def label(self, s): self.L.append(s + ":")
    def newlabel(self, p="L"):
        self.uid += 1; return f"{p}_{self.uid}"
    def lds(self, s):
        self.e(s); self.lds_seq += 1; return self.lds_seq
    def wait_lds(self, tok):
        self.e(f"s_waitcnt lgkmcnt({min(self.lds_seq - tok, 15)})")
    def nop(self, n):
        while n > 0:
            k = min(n, 16); self.e(f"s_nop {k-1}"); n -= k
    def text(self): return "\n".join(self.L) + "\n"

def vr(b, n): return f"v[{b}:{b+n-1}]"
def sr(b): return f"s[{b}:{b+3}]"
MF = "v_mfma_f32_16x16x32_bf16"

SLOT = 32768
LDS_BYTES = SLOT * 5
KRING, VRING = 0, 49152
XQ = 4 * SLOT
MA, MB, MSTAT = 0, 65536, 32768
LS = [3 * SLOT, 4 * SLOT, 0, 2 * SLOT, SLOT]
CSL = [0, 1, 0, 1, 0, 1, 2, 3, 4, 0, 1, 2, 3, 4, 0, 1]
CS = [LS[i] for i in CSL]
FLAGLDS = 32768 + 8192

S_K, S_V, S_WQ, S_X, S_O, S_WO, S_OUT, S_DBG, S_OL = 20, 24, 28, 32, 36, 40, 44, 48, 80
sW, sQG, sKH, sB, sH, sC, sNC, sTOFF, sTOFV, sJ = range(52, 62)
sT0, sT1, sT2, sT3 = 64, 65, 66, 67
sW2K, sB2, sQB, sNB, sROT = 68, 69, 70, 71, 73
sW4K, sF, sHR = 78, 79, 84
sW2KV = 85

vLANE = 1
vKOFF = 2
vVOFF = 4
vST = 7
vKA = 8
vONE = 12
vVA = 16
vM = 24
vMT = 26
vT2 = 28
vAL = 30
vQ = 32
vO = 64
vS = [128, 144]
vP = 160
vKF = 168
vVF = 200
vDUM = 232
vDO = 236
vTMP = 240
vNMT = 240
vLA = 248
vSTT = 6
vQACC = 64
vFR = 96
vXLD, vWLD = 12, 14
vXRD = 24
vWA = 26
vACC = 224
AB = [32, 48, 64, 80, 96, 112, 128, 144, 160, 176, 8]
AB = AB + AB[:5]
vB = 192
tAA = 2

def srd(a, s, lo, hi, off_sgpr, nbytes):
    a.e(f"s_add_u32 s{s}, s{lo}, s{off_sgpr}")
    a.e(f"s_addc_u32 s{s+1}, s{hi}, 0")
    a.e(f"s_mov_b32 s{s+2}, {nbytes:#x}")
    a.e(f"s_mov_b32 s{s+3}, 0x20000")

COST = {"v_exp_f32": 8, "v_rcp_f32": 8}
def cost(line):
    op = line.split()[0]
    if op.startswith("buffer_load"): return 16
    if op.startswith("s_"): return 2
    return COST.get(op, 4)

def gen(cfg):
    a = Asm()
    OB = cfg.get("ob", 1); HB = cfg.get("hb", 2); ST = cfg.get("stamp", 0)

    def stamp(idx):
        if not ST: return
        a.e("s_memrealtime s[74:75]"); a.e("s_waitcnt lgkmcnt(0)")
        if idx is not None: a.e(f"v_writelane_b32 v{vST}, s74, {idx}")
        else:
            a.e(f"s_add_u32 s76, s{sJ}, 8"); a.e(f"v_cmp_eq_u32 vcc, s76, v{vLANE}"); a.e(f"v_mov_b32 v{vSTT}, s74"); a.e("s_nop 1")
            a.e(f"v_cndmask_b32 v{vST}, v{vST}, v{vSTT}, vcc")
            a.e("s_memtime s[74:75]"); a.e("s_waitcnt lgkmcnt(0)"); a.e(f"v_mov_b32 v{vSTT}, s74"); a.e("s_nop 1")
            a.e(f"v_cndmask_b32 v0, v0, v{vSTT}, vcc")
    def cstamp(idx):
        if not ST: return
        a.e("s_memtime s[74:75]"); a.e("s_waitcnt lgkmcnt(0)"); a.e(f"v_writelane_b32 v{vST}, s74, {idx}")

    def item_lines(n3, with_k=True, with_v=True):
        L = []
        if with_k:
            L.append([f"s_add_u32 s{sT0}, s{sW2K}, {KRING + n3*16384}", f"s_mov_b32 m0, s{sT0}", "s_nop 0",
                      f"buffer_load_dwordx4 v{vKOFF}, {sr(S_K)}, s{sTOFF} offen nt lds"])
            L.append([f"buffer_load_dwordx4 v{vKOFF+1}, {sr(S_K)}, s{sTOFF} offen offset:1024 nt lds",
                      f"s_add_u32 s{sTOFF}, s{sTOFF}, 16384"])
        if with_v:
            L.append([f"s_add_u32 s{sT0}, s{sW2K}, {VRING + n3*16384}", f"s_mov_b32 m0, s{sT0}", "s_nop 0",
                      f"buffer_load_dwordx4 v{vVOFF}, {sr(S_V)}, s{sTOFV} offen nt lds"])
            L.append([f"buffer_load_dwordx4 v{vVOFF+1}, {sr(S_V)}, s{sTOFV} offen offset:1024 nt lds",
                      f"s_add_u32 s{sTOFV}, s{sTOFV}, 16384"])
        return L
    def emit_groups(G):
        for g in G:
            for l in g: a.e(l)
    def wo_chunk_lines(k, vdo):
        G = [[f"s_add_u32 s{sT0}, s{sW4K}, {CS[k]}", f"s_mov_b32 m0, s{sT0}",
              f"s_lshl_b32 s{sT1}, s{sHR}, 15", f"s_add_u32 s{sT1}, s{sT1}, {k*32768}", (f"s_and_b32 s{sT1}, s{sT1}, 0x7ffff" if not cfg.get("nowo") else f"s_mov_b32 s{sT1}, 0x100000"),
              f"buffer_load_dwordx4 v{vdo}, {sr(S_WO)}, s{sT1} offen lds"]]
        for i in range(1, 4):
            G.append([f"buffer_load_dwordx4 v{vdo+i}, {sr(S_WO)}, s{sT1} offen offset:{i*1024} lds"])
        return G

    a.L += [f".globl {NAME}", ".p2align 8", f".type {NAME},@function"]; a.label(NAME)
    a.e("s_cmp_ge_u32 s2, 256"); a.e("s_cbranch_scc1 L_end")
    a.e("s_load_dwordx16 s[4:19], s[0:1], 0")
    a.e("v_lshrrev_b32 v2, 6, v0")
    a.e(f"v_and_b32 v{vLANE}, 63, v0")
    a.e(f"v_readfirstlane_b32 s{sW}, v2")
    a.e(f"s_and_b32 s{sT0}, s2, 7"); a.e(f"s_lshr_b32 s{sT1}, s2, 3")
    a.e(f"s_and_b32 s{sT2}, s{sT1}, {(1<<HB)-1}")
    a.e(f"s_lshr_b32 s{sT3}, s{sT1}, {HB}")
    a.e(f"s_and_b32 s{sH}, s{sT0}, {(1<<(5-HB))-1}"); a.e(f"s_lshl_b32 s{sH}, s{sH}, {HB}"); a.e(f"s_add_u32 s{sH}, s{sH}, s{sT2}")
    a.e(f"s_lshr_b32 s{sB}, s{sT0}, {5-HB}"); a.e(f"s_lshl_b32 s{sB}, s{sB}, {5-HB}"); a.e(f"s_add_u32 s{sB}, s{sB}, s{sT3}")
    RA, RB = {2: (1, 2), 3: (2, 1), 4: (4, 1), 5: (0, 1)}[HB]
    a.e(f"s_mul_i32 s{sROT}, s{sT3}, {RA}"); a.e(f"s_mul_i32 s{sT2}, s{sT2}, {RB}"); a.e(f"s_add_u32 s{sROT}, s{sROT}, s{sT2}")
    a.e(f"s_and_b32 s{sQB}, s{sT1}, 3")
    a.e(f"s_lshr_b32 s{sT2}, s{sT1}, 2")
    a.e(f"s_and_b32 s{sNB}, s{sT2}, {(1<<(3-OB))-1}")
    a.e(f"s_lshr_b32 s{sT2}, s{sT2}, {3-OB}")
    a.e(f"s_and_b32 s{sB2}, s{sT0}, {(1<<(3-OB))-1}"); a.e(f"s_lshl_b32 s{sB2}, s{sB2}, {OB}"); a.e(f"s_add_u32 s{sB2}, s{sB2}, s{sT2}")
    a.e(f"s_lshr_b32 s{sT3}, s{sT0}, {3-OB}"); a.e(f"s_lshl_b32 s{sT3}, s{sT3}, {3-OB}"); a.e(f"s_add_u32 s{sNB}, s{sNB}, s{sT3}")
    a.e(f"s_lshl_b32 s{sHR}, s{sNB}, 1"); a.e(f"s_add_u32 s{sHR}, s{sHR}, s{sQB}")
    a.e(f"s_lshl_b32 s{sT2}, s{sB2}, 2"); a.e(f"s_add_u32 s{sHR}, s{sHR}, s{sT2}"); a.e(f"s_and_b32 s{sHR}, s{sHR}, {7 if cfg.get('rot8', 1) else 6}")
    a.e(f"s_lshl_b32 s{sHR}, s{sHR}, 1")
    a.e(f"s_and_b32 s{sQG}, s{sW}, 3"); a.e(f"s_lshr_b32 s{sKH}, s{sW}, 2")
    a.e(f"s_lshl_b32 s{sW2K}, s{sW}, 11"); a.e(f"s_lshl_b32 s{sW4K}, s{sW}, 12")
    a.e(f"s_mov_b32 s{sC}, {f32bits(C_SCALE):#x}"); a.e(f"s_mov_b32 s{sNC}, {f32bits(-C_SCALE):#x}")
    g, l15, l8, ch, r, c8, tA, tB = [vTMP + i for i in range(8)]
    a.e(f"v_lshrrev_b32 v{g}, 4, v{vLANE}")
    a.e(f"v_and_b32 v{l15}, 15, v{vLANE}")
    a.e(f"v_lshrrev_b32 v{l8}, 3, v{vLANE}")
    a.e(f"v_and_b32 v{ch}, 7, v{vLANE}")
    a.e(f"s_and_b32 s{sT0}, s{sW}, 1"); a.e(f"s_lshl_b32 s{sT0}, s{sT0}, 3")
    a.e(f"v_lshlrev_b32 v{tA}, 1, v{g}")
    a.e(f"v_or_b32 v{tA}, s{sT0}, v{tA}")
    a.e(f"v_xor_b32 v{tA}, v{tA}, v{l15}")
    a.e(f"v_lshlrev_b32 v{tA}, 4, v{tA}")
    a.e(f"v_lshl_add_u32 v{vWLD}, v{g}, 13, v{tA}")
    a.e(f"s_lshl_b32 s{sT0}, s{sW}, 16")
    a.e(f"v_add_u32 v{vWLD}, s{sT0}, v{vWLD}")
    a.e(f"v_add_u32 v{vWLD+1}, {32768-1024}, v{vWLD}")
    a.e(f"v_lshrrev_b32 v{tA}, 1, v{l8}")
    a.e(f"v_xor_b32 v{tA}, v{tA}, v{ch}")
    a.e(f"v_lshlrev_b32 v{tA}, 4, v{tA}")
    a.e(f"v_lshl_add_u32 v{vXLD}, v{l8}, 10, v{tA}")
    a.e(f"s_lshl_b32 s{sT0}, s{sW}, 14")
    a.e(f"v_add_u32 v{vXLD}, s{sT0}, v{vXLD}")
    a.e(f"v_xor_b32 v{vXLD+1}, 64, v{vXLD}")
    a.e(f"v_add_u32 v{vXLD+1}, {8192-1024}, v{vXLD+1}")
    a.e("s_waitcnt lgkmcnt(0)")
    if ST: a.e(f"v_mov_b32 v{vST}, 0")
    stamp(0)
    a.e(f"s_lshl_b32 s{sT1}, s{sH}, 8")
    srd(a, S_WQ, 10, 11, sT1, 0x400000 - 31 * 256)
    a.e(f"s_lshl_b32 s{sT1}, s{sB}, 17")
    srd(a, S_X, 4, 5, sT1, 0x20000)
    def S_lines(st):
        slot = 1 + st % 4
        return [[f"s_add_u32 s{sT2}, s{sROT}, {st}", f"s_and_b32 s{sT2}, s{sT2}, 7",
                 f"s_add_u32 s{sT3}, s{sW2K}, {slot*SLOT}", f"s_mov_b32 m0, s{sT3}",
                 f"s_lshl_b32 s{sT1}, s{sT2}, 19", f"s_lshl_b32 s{sT2}, s{sT2}, 7",
                 f"buffer_load_dwordx4 v{vXLD}, {sr(S_X)}, s{sT2} offen lds"],
                [f"buffer_load_dwordx4 v{vXLD+1}, {sr(S_X)}, s{sT2} offen offset:1024 lds"],
                [f"s_add_u32 s{sT3}, s{sT3}, 16384", f"s_mov_b32 m0, s{sT3}", "s_nop 0",
                 f"buffer_load_dwordx4 v{vWLD}, {sr(S_WQ)}, s{sT1} offen lds"],
                [f"buffer_load_dwordx4 v{vWLD+1}, {sr(S_WQ)}, s{sT1} offen offset:1024 lds"]]
    for st in range(2): emit_groups(S_lines(st))
    a.e(f"s_lshl_b32 s{sT0}, s{sW}, 3"); a.e(f"s_and_b32 s{sT0}, s{sT0}, 8")
    a.e(f"v_add_u32 v{tA}, s{sT0}, v{g}")
    a.e(f"v_xor_b32 v{tA}, v{tA}, v{l15}")
    a.e(f"v_lshlrev_b32 v{tA}, 4, v{tA}")
    a.e(f"v_lshl_add_u32 v{vKOFF}, v{g}, 8, v{tA}")
    a.e(f"v_add_u32 v{vKOFF}, s{sW2K}, v{vKOFF}")
    a.e(f"v_xor_b32 v{vKOFF+1}, 64, v{vKOFF}")
    a.e(f"v_lshlrev_b32 v{tA}, 1, v{g}")
    a.e(f"v_xor_b32 v{tB}, v{tA}, v{l15}")
    a.e(f"v_lshlrev_b32 v{tB}, 4, v{tB}")
    a.e(f"v_lshl_add_u32 v{vVOFF}, v{g}, 8, v{tB}")
    a.e(f"v_add_u32 v{vVOFF}, s{sW2K}, v{vVOFF}")
    a.e(f"v_xor_b32 v{vVOFF+1}, 128, v{vVOFF}")
    a.e(f"v_xor_b32 v{tB}, v{tA}, v{ch}")
    a.e(f"v_lshlrev_b32 v{tB}, 4, v{tB}")
    a.e(f"v_lshl_add_u32 v{vDO}, v{l8}, 10, v{tB}")
    for i in range(1, 4): a.e(f"v_add_u32 v{vDO+i}, {i*(8192-1024)}, v{vDO}")
    a.e(f"s_lshl_b32 s{sT0}, s{sB}, 5"); a.e(f"s_add_u32 s{sT0}, s{sT0}, s{sH}"); a.e(f"s_lshl_b32 s{sT1}, s{sT0}, 19")
    srd(a, S_K, 6, 7, sT1, 0x80000 if not cfg.get("nokv") else 16384)
    srd(a, S_V, 8, 9, sT1, 0x80000 if not cfg.get("nokv") else 16384)
    a.e(f"s_mov_b32 s{sTOFF}, 0"); a.e(f"s_mov_b32 s{sTOFV}, 0")
    a.e(f"s_lshl_b32 s{sT1}, s{sB}, 21"); a.e(f"s_lshl_b32 s{sT0}, s{sH}, 13"); a.e(f"s_add_u32 s{sT1}, s{sT1}, s{sT0}")
    srd(a, S_O, 18, 19, sT1, 3 * 262144 + 8192)
    a.e(f"s_lshl_b32 s{sT1}, s{sB2}, 21"); a.e(f"s_lshl_b32 s{sT0}, s{sQB}, 18"); a.e(f"s_add_u32 s{sT1}, s{sT1}, s{sT0}")
    a.e(f"s_lshl_b32 s{sT0}, s{sW}, 15"); a.e(f"s_add_u32 s{sT1}, s{sT1}, s{sT0}")
    srd(a, S_OL, 18, 19, sT1, 32768)
    a.e(f"s_lshl_b32 s{sT0}, s{sW}, 19"); a.e(f"s_lshl_b32 s{sT1}, s{sNB}, 7"); a.e(f"s_add_u32 s{sT0}, s{sT0}, s{sT1}")
    srd(a, S_WO, 12, 13, sT0, 511 * 1024 + 128)
    a.e(f"s_lshl_b32 s{sT0}, s{sB2}, 17"); a.e(f"s_lshl_b32 s{sT1}, s{sQB}, 15"); a.e(f"s_add_u32 s{sT0}, s{sT0}, s{sT1}")
    a.e(f"s_lshl_b32 s{sT1}, s{sNB}, 7"); a.e(f"s_add_u32 s{sT0}, s{sT0}, s{sT1}")
    srd(a, S_OUT, 14, 15, sT0, 31 * 1024 + 128)
    a.e(f"s_mov_b32 s{S_DBG}, s16"); a.e(f"s_mov_b32 s{S_DBG+1}, s17"); a.e(f"s_mov_b32 s{S_DBG+2}, 256"); a.e(f"s_mov_b32 s{S_DBG+3}, 0x20000")
    for st in range(2, 4): emit_groups(S_lines(st))
    T1EARLY = cfg.get("t1early", 1)
    emit_groups(item_lines(0, with_v=False))
    if T1EARLY: emit_groups(item_lines(1, with_v=False))
    a.e(f"buffer_load_dword v{vDUM}, v{vVOFF}, {sr(S_V)}, 0 offen nt")

    a.e(f"v_bfe_u32 v{r}, v{vLANE}, 2, 2")
    a.e(f"v_and_b32 v{c8}, 3, v{vLANE}")
    a.e(f"v_lshlrev_b32 v{c8}, 3, v{c8}")
    a.e(f"s_lshl_b32 s{sT1}, s{sKH}, 7")
    kr = ch
    a.e(f"v_and_b32 v{kr}, 1, v{g}")
    a.e(f"v_lshl_add_u32 v{kr}, v{kr}, 2, v{r}")
    a.e(f"v_lshl_add_u32 v{tA}, v{kr}, 5, v{c8}")
    a.e(f"v_xor_b32 v{tA}, s{sT1}, v{tA}")
    a.e(f"v_lshl_add_u32 v{tB}, v{g}, 3, v{r}")
    a.e(f"v_lshl_add_u32 v{tB}, v{tB}, 8, v{tA}")
    a.e(f"v_add_u32 v{tB}, 16384, v{tB}")
    for tt in range(4): a.e(f"v_xor_b32 v{vWA+tt}, {tt<<5}, v{tB}")
    a.e(f"v_lshl_add_u32 v{tB}, v{g}, 2, v{r}")
    a.e(f"v_lshl_add_u32 v{tB}, v{tB}, 8, v{tA}")
    a.e(f"s_lshl_b32 s{sT0}, s{sKH}, 13"); a.e(f"s_add_u32 s{sT2}, s{sT0}, {VRING}")
    a.e(f"v_add_u32 v{tB}, s{sT2}, v{tB}")
    for aa in range(8): a.e(f"v_xor_b32 v{vVA+aa}, {aa<<5}, v{tB}")
    a.e(f"v_lshrrev_b32 v{tA}, 1, v{l15}")
    a.e(f"v_xor_b32 v{tA}, v{tA}, v{g}")
    a.e(f"v_lshlrev_b32 v{tA}, 4, v{tA}")
    a.e(f"v_lshl_add_u32 v{tA}, v{l15}, 7, v{tA}")
    a.e(f"s_lshl_b32 s{sT2}, s{sQG}, 12")
    a.e(f"v_add_u32 v{vXRD}, s{sT2}, v{tA}")
    a.e(f"v_xor_b32 v{vXRD+1}, 64, v{vXRD}")
    kq = l8
    a.e(f"v_xor_b32 v{kq}, v{g}, v{l15}")
    a.e(f"v_lshlrev_b32 v{kq}, 4, v{kq}")
    a.e(f"v_lshl_add_u32 v{kq}, v{l15}, 8, v{kq}")
    a.e(f"v_add_u32 v{tA}, s{sT0}, v{kq}")
    for ds in range(4): a.e(f"v_xor_b32 v{vKA+ds}, {ds<<6}, v{tA}")
    stamp(1)

    order = ["S0", "S1", "S2", "S3", "T0", "S4", "S5", "S6", "S7", "T1", "T2", "N0"]
    cnt = {n: 4 for n in order}
    cnt["N0"] = 0
    cnt["T0"] = (4 if T1EARLY else 2) + 1
    cnt["T1"] = 0 if T1EARLY else 2
    cur_hi = [0]
    def frag_regs(st, ks):
        b = vFR + (st % 2) * 48 + ks * 24
        return [b, b + 4], [b + 8 + 4 * tt for tt in range(4)]
    def read_ops(st):
        base = ((1 + st % 4) * SLOT) & 0xffff
        ops = []
        for ks in range(2):
            xs, ws_ = frag_regs(st, ks)
            for qt in range(2):
                ops.append(f"ds_read_b128 {vr(xs[qt],4)}, v{vXRD+ks} offset:{base+qt*2048}")
            for tt in range(4):
                ops.append(f"ds_read_b64_tr_b16 {vr(ws_[tt],2)}, v{vWA+tt} offset:{base+ks*8192}")
                ops.append(f"ds_read_b64_tr_b16 {vr(ws_[tt]+2,2)}, v{vWA+tt} offset:{base+ks*8192+1024}")
        return ops
    def set_hi(st):
        hi_add = ((1 + st % 4) * SLOT) & ~0xffff
        if hi_add != cur_hi[0]:
            a.e(f"s_mov_b32 s{sT0}, {hi_add - cur_hi[0]}")
            for rr in [vXRD, vXRD + 1] + [vWA + i for i in range(4)]:
                a.e(f"v_add_u32 v{rr}, s{sT0}, v{rr}")
            cur_hi[0] = hi_add
    def sync_step(st):
        issued = 5 + max(st - 1, 0)
        idx = order.index(f"S{st}")
        after = sum(cnt[n] for n in order[idx + 1:issued])
        a.e(f"s_waitcnt vmcnt({after}) lgkmcnt(0)")
        a.e("s_barrier")
        if st == 0: stamp(2); cstamp(52)
        if st == 4: stamp(3)
    def next_groups(st):
        n = order[4 + st]
        if n[0] == "S": return S_lines(int(n[1]))
        if n == "T1" and not T1EARLY: return item_lines(1, with_v=False)
        if n == "T2": return item_lines(2)
        return []
    if cfg.get("qmode", 1) == 1:
        for st in range(8):
            set_hi(st)
            sync_step(st)
            dma = next_groups(st) if st >= 1 else []
            ops = read_ops(st)
            a.lds_seq = 0
            LA = cfg.get("qla", 8)
            toks = []
            def pump(n):
                for _ in range(n):
                    if ops: toks.append(a.lds(ops.pop(0)))
            pump(LA)
            for ks in range(2):
                xs, ws_ = frag_regs(st, ks)
                for tt in range(4):
                    need = ks * 10 + 2 + 2 * tt + 2
                    while len(toks) < need: pump(1)
                    a.wait_lds(toks[need - 1])
                    for qt in range(2):
                        acc = vQACC + (tt * 2 + qt) * 4
                        cin = "0" if (st == 0 and ks == 0) else vr(acc, 4)
                        a.e(f"{MF} {vr(acc,4)}, {vr(ws_[tt],4)}, {vr(xs[qt],4)}, {cin}")
                        pump(1)
                    pump(1)
                    if dma:
                        for l in dma.pop(0): a.e(l)
                    if st == 7:
                        for i in range(4): a.e(f"v_mov_b32 v{vO+32+4*(ks*4+tt)+i}, 0")
        a.e("s_barrier")
    else:
        sync_step(0)
        ops = read_ops(0)
        for o in ops[:15]: a.e(o)
        a.e("s_waitcnt lgkmcnt(8)")
        for o in ops[15:]: a.e(o)
        for st in range(8):
            ops = []; dma = []
            if st < 7:
                set_hi(st + 1)
                sync_step(st + 1)
                ops = read_ops(st + 1)
                dma = next_groups(st + 1)
            else:
                a.e("s_waitcnt lgkmcnt(0)")
                a.e("s_barrier")
            m = 0
            for ks in range(2):
                xs, ws_ = frag_regs(st, ks)
                for tt in range(4):
                    for qt in range(2):
                        acc = vQACC + (tt * 2 + qt) * 4
                        cin = "0" if (st == 0 and ks == 0) else vr(acc, 4)
                        if not (cfg.get("qskip") and st > 0): a.e(f"{MF} {vr(acc,4)}, {vr(ws_[tt],4)}, {vr(xs[qt],4)}, {cin}")
                        if cfg.get("qslow") and st < cfg.get("qslowsteps", 8): a.nop(cfg["qslow"])
                        if ops and m >= 6: a.e("s_waitcnt lgkmcnt(10)")
                        nrd = 2 if m < 8 else 1
                        if cfg.get("qeven"): nrd = 2 if m % 3 == 0 and m < 13 else 1
                        for o in ops[:nrd]: a.e(o)
                        ops = ops[nrd:]
                        if dma and ((m >= 2 and m % 2 == 0) if not cfg.get("qeven") else m % 4 == 2):
                            for l in dma.pop(0): a.e(l)
                        if st == 7 and m < 8:
                            for i in range(4): a.e(f"v_mov_b32 v{vO+32+4*m+i}, 0")
                        m += 1
            assert not ops and not dma, (len(ops), len(dma))
    stamp(4); cstamp(53)
    qw = tA
    a.e(f"v_lshrrev_b32 v{qw}, 1, v{g}")
    a.e(f"v_xor_b32 v{qw}, v{qw}, v{l15}")
    a.e(f"v_lshlrev_b32 v{qw}, 4, v{qw}")
    a.e(f"v_lshl_add_u32 v{qw}, v{l15}, 8, v{qw}")
    a.e(f"v_and_b32 v{tB}, 1, v{g}")
    a.e(f"v_lshl_add_u32 v{qw}, v{tB}, 3, v{qw}")
    a.e(f"s_lshl_b32 s{sT0}, s{sQG}, 13"); a.e(f"s_add_u32 s{sT0}, s{sT0}, {XQ}")
    a.e(f"s_lshl_b32 s{sT1}, s{sKH}, 7")
    a.e(f"v_xor_b32 v{qw}, s{sT1}, v{qw}")
    a.e(f"v_add_u32 v{qw}, s{sT0}, v{qw}")
    a.e(f"v_add_u32 v{kq}, s{sT0}, v{kq}")
    for tt in range(4):
        a.e(f"v_xor_b32 v{tB}, {tt<<5}, v{qw}")
        for qt in range(2):
            acc = vQACC + (tt * 2 + qt) * 4
            d = vQ + (tt * 2 + qt) * 2
            for i in range(4): a.e(f"v_mul_f32 v{acc+i}, s{sC}, v{acc+i}")
            a.e(f"v_cvt_pk_bf16_f32 v{d}, v{acc}, v{acc+1}")
            a.e(f"v_cvt_pk_bf16_f32 v{d+1}, v{acc+2}, v{acc+3}")
            a.e(f"ds_write_b64 v{tB}, {vr(d,2)} offset:{qt*4096}")
    for i in range(4): a.e(f"v_mov_b32 v{vONE+i}, 0x3f803f80")
    for i in range(32): a.e(f"v_mov_b32 v{vO+i}, 0")
    a.e(f"s_mov_b32 s{sJ}, 0")
    for ds in range(1, 4): a.e(f"v_xor_b32 v{vTMP+8+ds}, {ds<<6}, v{kq}")
    a.e(f"s_waitcnt vmcnt({cnt['T1'] + 4}) lgkmcnt(0)")
    a.e("s_barrier")
    for qt in range(2):
        for ds in range(4):
            ad = kq if ds == 0 else vTMP + 8 + ds
            a.e(f"ds_read_b128 {vr(vQ+(qt*4+ds)*4,4)}, v{ad} offset:{qt*4096}")
    a.e("s_waitcnt lgkmcnt(4)")
    for kt in range(2):
        for ds in range(4):
            a.e(f"ds_read_b128 {vr(vKF+(kt*4+ds)*4,4)}, v{vKA+ds} offset:{KRING + kt*4096}")
    for i in range(8): a.e(f"v_mov_b32 v{vLA+i}, 0")
    stamp(6); cstamp(50)

    tagpar = {}
    def els_(): return [(kt * 2 + qt) * 4 + rr for qt in range(2) for kt in range(2) for rr in range(4)]
    def first_ref():
        for qt in range(2):
            xgroup("v_max_f32", vMT + qt, vT2)
            a.e(f"v_mov_b32 v{vM+qt}, v{vMT+qt}")
            for i in range(4): a.e(f"v_sub_f32 v{vNMT+4*qt+i}, 0, v{vMT+qt}")
            for k_ in range(8):
                e_ = vS[0] + els_()[8 * qt + k_]
                a.e(f"v_sub_f32 v{e_}, v{e_}, v{vMT+qt}")
    def iteration(i6, do_qk, do_pv, do_kr, wait, issue, tag, extra=None, post=None):
        par = i6 % 2
        slot = ((i6 + 1) % 3) * 16384
        Sn, Sp = vS[par], vS[1 - par]
        a.lds_seq = 0
        a.e(f"s_waitcnt vmcnt({wait}) lgkmcnt(0)")
        a.e("s_barrier")
        if ST >= 2: stamp(None)
        if ST == 1 and tag in ("p29", "p32"): cstamp(54 if tag == "p29" else 55)
        G = list(issue) if issue else []
        els = [(kt * 2 + qt) * 4 + rr for qt in range(2) for kt in range(2) for rr in range(4)]
        F1 = []
        if do_pv:
            for k_ in range(16):
                F1.append(f"v_exp_f32 v{Sp+els[k_]}, v{Sp+els[k_]}")
                if k_ >= 2 and k_ % 2 == 0:
                    p = k_ // 2 - 1
                    F1.append(f"v_cvt_pk_bf16_f32 v{vP+p}, v{Sp+els[2*p]}, v{Sp+els[2*p+1]}")
            F1.append("s_nop 0")
            F1.append(f"v_cvt_pk_bf16_f32 v{vP+7}, v{Sp+els[14]}, v{Sp+els[15]}")
        vtok = {}
        def vread(h):
            aa, sec = h // 2, h % 2
            tk = a.lds(f"ds_read_b64_tr_b16 {vr(vVF+4*aa+2*sec,2)}, v{vVA+aa} offset:{slot+sec*4096}")
            if sec: vtok[aa] = tk
        def drain(F, budget):
            used = 0
            while F and used < budget:
                l = F.pop(0); a.e(l); used += cost(l)
        if do_qk:
            m = 0
            for kt in range(2):
                for qt in range(2):
                    acc = Sn + (kt * 2 + qt) * 4
                    for ds in range(4):
                        cin = ("0" if tag == "i0" else vr(vNMT + 4 * qt, 4)) if ds == 0 else vr(acc, 4)
                        a.e(f"{MF} {vr(acc,4)}, {vr(vKF+(kt*4+ds)*4,4)}, {vr(vQ+(qt*4+ds)*4,4)}, {cin}")
                        if G and m % 2 == 0:
                            for l in G.pop(0): a.e(l)
                        if do_pv:
                            if m == 15: a.e("s_waitcnt lgkmcnt(14)")
                            vread(m)
                            drain(F1, cfg.get("gap1", 8))
                        m += 1
        else:
            for h in range(15): vread(h)
            emit_groups(G); G = []
            drain(F1, 64)
            a.e("s_waitcnt lgkmcnt(14)")
            vread(15)
        emit_groups(G)
        if extra: extra()
        drain(F1, 10000)
        F2 = []
        F3 = []
        if do_qk:
            for qt in range(2):
                e_ = [Sn + els[8 * qt + k_] for k_ in range(8)]
                F3.append(f"v_max3_f32 v{vMT+qt}, v{e_[0]}, v{e_[1]}, v{e_[2]}")
                F3.append(f"v_max3_f32 v{vMT+qt}, v{e_[3]}, v{e_[4]}, v{vMT+qt}")
                F3.append(f"v_max3_f32 v{vMT+qt}, v{e_[5]}, v{e_[6]}, v{vMT+qt}")
                F3.append(f"v_max_f32 v{vMT+qt}, v{e_[7]}, v{vMT+qt}")
            F3.append(f"v_max_f32 v{vAL}, v{vMT}, v{vMT+1}")
            F3.append(f"v_cmp_lt_f32 vcc, 0x41000000, v{vAL}")
        def kread(x):
            kt, ds = x // 4, x % 4
            a.lds(f"ds_read_b128 {vr(vKF+x*4,4)}, v{vKA+ds} offset:{KRING+slot+kt*4096}")
        if do_pv:
            a.nop(2)
            for qt in range(2):
                a.e(f"{MF} {vr(vLA+4*qt,4)}, {vr(vONE,4)}, {vr(vP+4*qt,4)}, {vr(vLA+4*qt,4)}")
            m = 0
            for aa in range(8):
                a.wait_lds(vtok[aa])
                for qt in range(2):
                    acc = vO + (aa * 2 + qt) * 4
                    a.e(f"{MF} {vr(acc,4)}, {vr(vVF+4*aa,4)}, {vr(vP+4*qt,4)}, {vr(acc,4)}")
                    if do_kr and 2 <= m < 10: kread(m - 2)
                    if 4 <= m < 15: drain(F3, cfg.get("gap2", 4))
                    m += 1
        else:
            if do_kr:
                for x in range(8): kread(x)
            a.nop(4)
        drain(F3, 10000)
        if post: post()
        a.e(f"s_add_u32 s{sJ}, s{sJ}, 1")
        if tag == "i0":
            first_ref()
        elif do_qk:
            a.e(f"s_cbranch_vccnz L_resc_{tag}")
            a.label(f"L_back_{tag}")
            tagpar[tag] = par
    def xgroup(op, reg, tmp):
        a.e(f"v_mov_b32 v{tmp}, v{reg}")
        a.nop(2)
        a.e(f"v_permlane32_swap_b32 v{reg}, v{tmp}")
        a.e(f"{op} v{reg}, v{reg}, v{tmp}")
        a.e(f"v_mov_b32 v{tmp}, v{reg}")
        a.nop(2)
        a.e(f"v_permlane16_swap_b32 v{reg}, v{tmp}")
        a.e(f"{op} v{reg}, v{reg}, v{tmp}")
    def rescale_code(par):
        a.label(f"L_resc{par}")
        for qt in range(2):
            xgroup("v_max_f32", vMT + qt, vT2)
            a.e(f"v_max_f32 v{vMT+qt}, 0, v{vMT+qt}")
            a.e(f"v_exp_f32 v{vAL+qt}, -v{vMT+qt}")
            a.e(f"v_add_f32 v{vM+qt}, v{vM+qt}, v{vMT+qt}")
            for i in range(4): a.e(f"v_sub_f32 v{vNMT+4*qt+i}, 0, v{vM+qt}")
            for k_ in range(8):
                e_ = vS[par] + els_()[8 * qt + k_]
                a.e(f"v_sub_f32 v{e_}, v{e_}, v{vMT+qt}")
        for qt in range(2):
            for i in range(4): a.e(f"v_mul_f32 v{vLA+4*qt+i}, v{vLA+4*qt+i}, v{vAL+qt}")
        for aa in range(8):
            for qt in range(2):
                for i in range(4):
                    a.e(f"v_mul_f32 v{vO+(aa*2+qt)*4+i}, v{vO+(aa*2+qt)*4+i}, v{vAL+qt}")
        a.e("s_setpc_b64 s[88:89]")
    def rescale_stub(tag):
        a.label(f"L_resc_{tag}")
        a.e("s_getpc_b64 s[88:89]")
        a.e(f"s_add_u32 s88, s88, L_back_{tag}-L_resc_{tag}-4")
        a.e("s_addc_u32 s89, s89, -1")
        a.e(f"s_branch L_resc{tagpar[tag]}")
    TCH = cfg.get("touch", 1)
    def touches():
        ta = vT2
        a.e(f"s_lshl_b32 s{sT0}, s{sB}, 21"); a.e(f"s_add_u32 s{sT0}, s{sT0}, {(1<<20)+65536}")
        a.e(f"v_mov_b32 v{ta}, s{sT0}")
        a.e(f"s_lshl_b32 s{sT0}, s{sB2}, 21"); a.e(f"s_add_u32 s{sT0}, s{sT0}, {(1<<20)+65536}")
        a.e(f"v_mov_b32 v{ta+1}, s{sT0}")
        a.e(f"v_mov_b32 v{ta+2}, 0")
        a.e(f"global_load_dword v{vDUM}, v{ta}, s[18:19]")
        a.e(f"global_load_dword v{vDUM}, v{ta+1}, s[18:19]")
        a.e(f"buffer_load_dword v{vDUM}, v{ta+2}, {sr(S_OUT)}, 0 offen")
        a.e(f"buffer_load_dword v{vDUM}, v{ta+2}, {sr(S_DBG)}, 0 offen sc1")
    PF = cfg.get("pf", -1)
    def wo_prefetch():
        lb = a.newlabel("L_pf")
        a.e(f"s_cmp_lg_u32 s{sJ}, {PF}"); a.e(f"s_cbranch_scc1 {lb}")
        ta = vT2
        nl = 1 << (3 - OB)
        rows_per_wave = 64 // nl
        a.e(f"s_lshr_b32 s{sT0}, s2, 3"); a.e(f"s_lshl_b32 s{sT0}, s{sT0}, 3"); a.e(f"s_add_u32 s{sT0}, s{sT0}, s{sW}")
        for rep in range(nl * 4096 // (64 * 256)):
            pass
        nrep = 4096 * nl // (256 * 64)
        a.e(f"s_mul_i32 s{sT0}, s{sT0}, {rows_per_wave * nrep * 1024}")
        a.e(f"s_lshr_b32 s{sT1}, s{sNB}, {3-OB}"); a.e(f"s_lshl_b32 s{sT1}, s{sT1}, {3-OB+7}")
        a.e(f"s_add_u32 s{sT0}, s{sT0}, s{sT1}")
        a.e(f"v_lshrrev_b32 v{ta}, {3-OB}, v{vLANE}")
        a.e(f"v_and_b32 v{ta+1}, {nl-1}, v{vLANE}")
        a.e(f"v_lshlrev_b32 v{ta+1}, 7, v{ta+1}")
        a.e(f"v_lshl_add_u32 v{ta}, v{ta}, 10, v{ta+1}")
        a.e(f"v_add_u32 v{ta}, s{sT0}, v{ta}")
        for rep in range(nrep):
            a.e(f"global_load_dword v{vDUM}, v{ta}, s[12:13]")
            if rep + 1 < nrep: a.e(f"v_add_u32 v{ta}, {rows_per_wave*1024}, v{ta}")
        a.label(lb)
    cur = [0]
    def aaddr_setup():
        tAT = vT2
        a.e(f"v_lshrrev_b32 v{tAT}, 4, v{vLANE}")
        a.e(f"v_bfe_u32 v{tAT+1}, v{vLANE}, 2, 2")
        a.e(f"v_lshl_add_u32 v{tAT+2}, v{tAT}, 2, v{tAT+1}")
        a.e(f"v_bfe_u32 v{tAT+3}, v{tAT+2}, 1, 2")
        a.e(f"v_and_b32 v{tAT}, 3, v{vLANE}")
        a.e(f"v_lshlrev_b32 v{tAT}, 3, v{tAT}")
        a.e(f"v_lshl_add_u32 v{tAT}, v{tAT+3}, 5, v{tAT}")
        a.e(f"v_lshl_add_u32 v{tAT}, v{tAT+2}, 7, v{tAT}")
        a.e(f"v_add_u32 v{tAT}, s{sW4K}, v{tAT}")
        for nt in range(4): a.e(f"v_xor_b32 v{tAA+nt}, {nt<<5}, v{tAT}")
    def a_reads(k):
        so = CS[k]
        win, base = so & ~0xffff, so & 0xffff
        if win != cur[0]:
            a.e(f"s_mov_b32 s{sT0}, {win - cur[0]}")
            for nt in range(4): a.e(f"v_add_u32 v{tAA+nt}, s{sT0}, v{tAA+nt}")
            cur[0] = win
        fb = AB[k]
        for nt in range(4):
            a.e(f"ds_read_b64_tr_b16 {vr(fb+4*nt,2)}, v{tAA+nt} offset:{base}")
            a.e(f"ds_read_b64_tr_b16 {vr(fb+4*nt+2,2)}, v{tAA+nt} offset:{base+2048}")
    tags = []
    iteration(0, True, False, True, 4, item_lines(0), "i0", extra=(touches if TCH == 2 else None))
    a.L.append(".p2align 6")
    a.label("L_loop")
    for u in range(6):
        i6 = 1 + u
        iteration(i6, True, True, True, 4, item_lines(i6 % 3), f"l{u}", extra=(wo_prefetch if (PF > 0 and u == (PF - 1) % 6) else None))
        tags.append(f"l{u}")
    a.e(f"s_cmp_lt_u32 s{sJ}, {cfg.get('short', 25)}"); a.e("s_cbranch_scc1 L_loop")
    E0 = cfg.get("e0", 27)
    icnt = lambda n: 0 if n > 33 else (2 if n > 31 else 4)
    extra_ops = {E0: 8 if TCH == 1 else 4, E0 + 1: 4}
    for i in range(25, 33):
        w_ = icnt(i + 2) + sum(extra_ops.get(j, 0) for j in (i - 2, i - 1))
        iss = item_lines(i % 3, with_k=(i + 3 < 32)) if i + 3 <= 33 else None
        ex = None; post = None
        if i == E0: ex = lambda: (emit_groups(wo_chunk_lines(0, vDO)), touches() if TCH == 1 else None)
        if i == E0 + 1: ex = lambda: emit_groups(wo_chunk_lines(1, vDO))
        if i == 31: post = lambda: (aaddr_setup(), a_reads(0), a.e("s_waitcnt lgkmcnt(4)"), a_reads(1))
        if i == 32: iss = wo_chunk_lines(2, vDO) + wo_chunk_lines(3, vDO)
        iteration(i, i < 32, True, i < 31, w_, iss, f"p{i}", extra=ex, post=post)
        if i < 32: tags.append(f"p{i}")
    a.e("s_branch L_loopdone")
    for tag in tags: rescale_stub(tag)
    rescale_code(0); rescale_code(1)
    a.label("L_loopdone")
    stamp(41); cstamp(51)
    if ST >= 2:
        a.e(f"s_lshl_b32 s76, s2, 3"); a.e(f"s_add_u32 s76, s76, s{sW}"); a.e("s_lshl_b32 s76, s76, 8"); a.e(f"s_add_u32 s76, s76, {65<<20}")
        a.e(f"v_lshlrev_b32 v{vSTT}, 2, v{vLANE}"); a.e(f"v_add_u32 v{vSTT}, s76, v{vSTT}")
        a.e(f"global_store_dword v{vSTT}, v0, s[18:19]"); a.e("s_waitcnt vmcnt(0)")

    if cfg.get("notail"): a.e("s_endpgm")
    ea = 128; mp = 132; mx = 136; st4 = 140
    a.e(f"v_lshlrev_b32 v{ea}, 4, v{vLANE}")
    a.e(f"s_lshl_b32 s{sT0}, s{sQG}, 13")
    a.e(f"v_add_u32 v{ea+1}, s{sT0}, v{ea}")
    a.e(f"s_cmp_eq_u32 s{sKH}, 0")
    a.e(f"s_cselect_b32 s{sT0}, {MA}, {MB}")
    a.e(f"s_cselect_b32 s{sT1}, {MB}, {MA}")
    a.e(f"v_add_u32 v{ea+2}, s{sT1}, v{ea+1}")
    a.e(f"v_add_u32 v{ea+1}, s{sT0}, v{ea+1}")
    a.e(f"s_lshl_b32 s{sT0}, s{sW}, 10"); a.e(f"s_add_u32 s{sT0}, s{sT0}, {MSTAT}")
    a.e(f"v_add_u32 v{ea+3}, s{sT0}, v{ea}")
    for i in range(8):
        a.e(f"ds_write_b128 v{ea+1}, {vr(vO+32+4*i,4)} offset:{i*1024}")
    for qt in range(2):
        a.e(f"v_mov_b32 v{st4+qt}, v{vM+qt}"); a.e(f"v_mov_b32 v{st4+2+qt}, v{vLA+4*qt}")
    a.e(f"ds_write_b128 v{ea+3}, {vr(st4,4)}")
    a.e(f"v_xor_b32 v{ea+3}, 4096, v{ea+3}")
    a.e("s_waitcnt lgkmcnt(0)"); a.e("s_barrier")
    a.e(f"ds_read_b128 {vr(mp,4)}, v{ea+3}")
    for i in range(8):
        a.e(f"ds_read_b128 {vr(vKF+4*i,4)}, v{ea+2} offset:{i*1024}")
    a.e(f"s_lshl_b32 s{sT0}, s{sQG}, 18"); a.e(f"s_lshl_b32 s{sT1}, s{sKH}, 12"); a.e(f"s_add_u32 s{sT2}, s{sT0}, s{sT1}")
    a.e("s_waitcnt lgkmcnt(8)")
    fs, fp = vT2, vAL
    for qt in range(2):
        a.e(f"v_max_f32 v{mx+qt}, v{vM+qt}, v{mp+qt}")
        a.e(f"v_sub_f32 v{fs+qt}, v{vM+qt}, v{mx+qt}")
        a.e(f"v_sub_f32 v{fp+qt}, v{mp+qt}, v{mx+qt}")
        a.e(f"v_exp_f32 v{fs+qt}, v{fs+qt}")
        a.e(f"v_exp_f32 v{fp+qt}, v{fp+qt}")
    for qt in range(2):
        a.e(f"v_mul_f32 v{mx+qt}, v{st4+2+qt}, v{fs+qt}")
        a.e(f"v_fma_f32 v{mx+qt}, v{mp+2+qt}, v{fp+qt}, v{mx+qt}")
    for qt in range(2): a.e(f"v_rcp_f32 v{mx+qt}, v{mx+qt}")
    a.nop(1)
    for qt in range(2):
        a.e(f"v_mul_f32 v{fs+qt}, v{fs+qt}, v{mx+qt}")
        a.e(f"v_mul_f32 v{fp+qt}, v{fp+qt}, v{mx+qt}")
    for aa in range(4):
        for qt in range(2):
            for i in range(4):
                a.e(f"v_mul_f32 v{vO+(aa*2+qt)*4+i}, v{vO+(aa*2+qt)*4+i}, v{fs+qt}")
    for mm in range(2):
        a.e(f"s_waitcnt lgkmcnt({4-4*mm})")
        for x in range(16 * mm, 16 * mm + 16):
            qt = (x // 4) % 2
            a.e(f"v_fma_f32 v{vO+x}, v{vKF+x}, v{fp+qt}, v{vO+x}")
        for qt in range(2):
            f = 2 * mm + qt
            for half in range(2):
                src = vO + ((2 * mm + half) * 2 + qt) * 4
                a.e(f"v_cvt_pk_bf16_f32 v{vVF+4*f+2*half}, v{src}, v{src+1}")
                a.e(f"v_cvt_pk_bf16_f32 v{vVF+4*f+2*half+1}, v{src+2}, v{src+3}")
            a.e(f"buffer_store_dwordx4 {vr(vVF+4*f,4)}, v{ea}, {sr(S_O)}, s{sT2} offen offset:{f*1024} sc1")
    stamp(42)
    tDO, tBO = 24, 6
    for i in range(4): a.e(f"v_mov_b32 v{tDO+i}, v{vDO+i}")
    vFD, vFC, vFG = 28, 29, 31
    a.e(f"v_lshlrev_b32 v{tBO}, 4, v{vLANE}")
    a.e(f"s_lshl_b32 s{sT0}, s{sB2}, 5"); a.e(f"s_lshl_b32 s{sT1}, s{sW}, 2"); a.e(f"s_add_u32 s{sT0}, s{sT0}, s{sT1}")
    a.e(f"v_mov_b32 v{vFG}, s{sT0}")
    a.e("s_waitcnt vmcnt(8)")
    a_reads(2)
    a.e("s_waitcnt lgkmcnt(0)")
    emit_groups(wo_chunk_lines(4, tDO))
    a.e("s_waitcnt vmcnt(8)")
    a_reads(3)
    a.e("s_waitcnt lgkmcnt(0)")
    emit_groups(wo_chunk_lines(5, tDO))
    a.e("s_waitcnt vmcnt(8)")
    a.e("s_barrier")
    a.e(f"s_cmp_lg_u32 s{sW}, 0"); a.e("s_cbranch_scc1 L_noflag")
    a.e(f"s_lshl_b32 s{sT0}, s{sB}, 5"); a.e(f"s_add_u32 s{sT0}, s{sT0}, s{sH}")
    a.e(f"v_mov_b32 v{vFD}, 1"); a.e(f"v_mov_b32 v{vFC}, s{sT0}")
    a.e("s_mov_b64 exec, 1")
    a.e(f"buffer_store_byte v{vFD}, v{vFC}, {sr(S_DBG)}, 0 offen sc1")
    a.e("s_mov_b64 exec, -1")
    a.label("L_noflag")
    stamp(43); cstamp(56)
    for c_ in (6, 7, 8): emit_groups(wo_chunk_lines(c_, tDO))
    for c_ in range(4, 11):
        a.e("s_waitcnt vmcnt(16)")
        a_reads(c_)
        a.e("s_waitcnt lgkmcnt(0)")
        emit_groups(wo_chunk_lines(c_ + 5, tDO))
    stamp(44); cstamp(57)
    def poll():
        a.e(f"buffer_load_dword v{vFD}, v{vFG}, {sr(S_DBG)}, 0 offen sc1")
        a.e("s_waitcnt vmcnt(0)")
        a.e(f"v_readfirstlane_b32 s{sF}, v{vFD}")
        a.e("s_nop 1")
    def wait_pair(k):
        a.e(f"s_add_u32 s{sT1}, s{sHR}, {k}"); a.e(f"s_and_b32 s{sT1}, s{sT1}, 15")
        a.e(f"s_lshr_b32 s{sT2}, s{sT1}, 2"); a.e(f"s_lshl_b32 s{sT2}, s{sT2}, 3")
        a.e(f"s_lshl_b32 s{sT1}, s{sT1}, 11")
        a.label(f"L_p{k}")
        a.e(f"s_lshr_b32 s{sT0}, s{sF}, s{sT2}"); a.e(f"s_and_b32 s{sT0}, s{sT0}, 0xff")
        a.e(f"s_cbranch_scc1 L_go{k}")
        a.e(f"s_sleep {cfg.get('psleep', 4)}")
        poll()
        a.e(f"s_branch L_p{k}")
        a.label(f"L_go{k}")
    def b_load(fr):
        a.e(f"buffer_load_dwordx4 {vr(vB+4*(fr%8),4)}, v{tBO}, {sr(S_OL)}, s{sT1} offen offset:{(fr%4)*1024} sc1")
    poll()
    for k in (0, 2):
        wait_pair(k)
        for fr in range(2 * k, 2 * k + 4): b_load(fr)
    stamp(45)
    for k in range(16):
        a.e(f"s_waitcnt vmcnt({min(6, 30 - 2*k)})" + (" lgkmcnt(0)" if k == 11 else ""))
        fb = AB[k]
        for nt in range(4):
            for qt in range(2):
                acc = vACC + (nt * 2 + qt) * 4
                cin = "0" if k == 0 else vr(acc, 4)
                a.e(f"{MF} {vr(acc,4)}, {vr(fb+4*nt,4)}, {vr(vB+4*((2*k+qt)%8),4)}, {cin}")
        if k + 4 <= 15:
            if k % 2 == 0: wait_pair(k + 4)
            b_load(2 * k + 8); b_load(2 * k + 9)
        if k < 5:
            if k >= 1: a.e("s_waitcnt lgkmcnt(4)")
            a_reads(11 + k)
    stamp(46); cstamp(58)
    a.e("s_barrier")
    q, wa, tq, gg = 2, 3, 4, 5
    a.e(f"v_lshrrev_b32 v{gg}, 4, v{vLANE}")
    a.e(f"v_and_b32 v{q}, 15, v{vLANE}")
    a.e(f"v_xor_b32 v{wa}, v{q}, v{gg}")
    a.e(f"v_lshlrev_b32 v{wa}, 4, v{wa}")
    a.e(f"v_lshl_add_u32 v{wa}, v{gg}, 9, v{wa}")
    a.e(f"s_lshl_b32 s{sT0}, s{sW}, 13")
    a.e(f"v_add_u32 v{wa}, s{sT0}, v{wa}")
    a.nop(2)
    for nt in range(4):
        a.e(f"v_xor_b32 v{tq}, {nt*64}, v{wa}")
        for qt in range(2):
            a.e(f"ds_write_b128 v{tq}, {vr(vACC+(nt*2+qt)*4,4)} offset:{nt*2048+qt*256}")
    a.e(f"s_lshl_b32 s{sT0}, s{sW}, 2")
    a.e(f"v_add_u32 v{gg}, s{sT0}, v{gg}")
    a.e(f"v_xor_b32 v{wa}, v{gg}, v{q}")
    a.e(f"v_lshlrev_b32 v{wa}, 4, v{wa}")
    a.e(f"v_lshl_add_u32 v{wa}, v{q}, 9, v{wa}")
    a.e(f"v_lshlrev_b32 v{tq}, 3, v{q}")
    a.e(f"v_lshl_add_u32 v{tq}, v{gg}, 10, v{tq}")
    a.e("s_waitcnt lgkmcnt(0)"); a.e("s_barrier")
    for s_ in range(8):
        a.e(f"ds_read_b128 {vr(vB+4*s_,4)}, v{wa} offset:{s_*8192}")
    for s_ in range(1, 8):
        a.e(f"s_waitcnt lgkmcnt({7-s_})")
        for i in range(4):
            a.e(f"v_add_f32 v{vB+i}, v{vB+i}, v{vB+4*s_+i}")
    a.e(f"v_cvt_pk_bf16_f32 v{vACC}, v{vB}, v{vB+1}")
    a.e(f"v_cvt_pk_bf16_f32 v{vACC+1}, v{vB+2}, v{vB+3}")
    a.e(f"buffer_store_dwordx2 {vr(vACC,2)}, v{tq}, {sr(S_OUT)}, 0 offen")
    stamp(47)
    if ST:
        a.e("s_waitcnt vmcnt(0)")
        stamp(48)
        a.e(f"s_lshl_b32 s76, s2, 3"); a.e(f"s_add_u32 s76, s76, s{sW}"); a.e("s_lshl_b32 s76, s76, 8"); a.e(f"s_add_u32 s76, s76, {64<<20}")
        a.e(f"v_lshlrev_b32 v2, 2, v{vLANE}"); a.e("v_add_u32 v2, s76, v2")
        a.e(f"global_store_dword v2, v{vST}, s[18:19]")
    a.label("L_end")
    a.e("s_endpgm")

    hdr = [f"; @launch grid=(256,1,1) block=(512,1,1) lds={LDS_BYTES}",
           '.amdgcn_target "amdgcn-amd-amdhsa--gfx950"', ".text"]
    txt = "\n".join(hdr) + "\n" + a.text()
    txt += f""".section .rodata,"a"
.p2align 6
.amdhsa_kernel {NAME}
  .amdhsa_next_free_vgpr 256
  .amdhsa_next_free_sgpr 96
  .amdhsa_accum_offset 256
  .amdhsa_group_segment_fixed_size 0
  .amdhsa_kernarg_size 64
  .amdhsa_user_sgpr_count 2
  .amdhsa_user_sgpr_kernarg_segment_ptr 1
  .amdhsa_system_sgpr_workgroup_id_x 1
.end_amdhsa_kernel
"""
    return txt

if __name__ == "__main__":
    out = sys.argv[1] if len(sys.argv) > 1 else "k.s"
    cfg = {}
    for kv in sys.argv[2:]:
        k, v = kv.split("=", 1)
        cfg[k] = int(v) if v.lstrip("-").isdigit() else v
    open(out, "w").write(gen(cfg))
```
